```python
import torch

def _softmax(x, axis=-1):
    return torch.softmax(x, dim=axis)
def _gelu(x):
    return torch.nn.functional.gelu(x, approximate="tanh")
def _silu(x):
    return torch.nn.functional.silu(x)
def _sigmoid(x):
    return torch.sigmoid(x)
def _layernorm(x, axis=-1, eps=1e-5):
    m = x.mean(dim=axis, keepdim=True)
    v = x.var(dim=axis, keepdim=True, unbiased=False)
    return (x - m) / torch.sqrt(v + eps)
def _scatter_add(tgt, idx, src, axis=0):
    return tgt.clone().index_add_(axis, idx, src)
def _segment_sum(src, seg, n):
    out = torch.zeros((n,) + src.shape[1:], dtype=src.dtype)
    return out.index_add_(0, seg, src)
def _pad(x, pw):
    flat = tuple(v for pair in reversed(pw) for v in pair)
    return torch.nn.functional.pad(x, flat)

kernel_name = 'standalone__gqa_softmax__near_ridge'

def setup_inputs():

    _w = (lambda a: (lambda t: t.to(torch.bfloat16) if t.is_floating_point() else t)(torch.as_tensor(a)))
    B, Hq, Hkv, Sq, Sk, D = 8, 32, 16, 384, 384, 128
    return {
        "q": _w((lambda *s: torch.randn(*s, dtype=torch.bfloat16) * 0.8)(B, Hq, Sq, D)),
        "k": _w((lambda *s: torch.randn(*s, dtype=torch.bfloat16) * 0.8)(B, Hkv, Sk, D)),
        "v": _w((lambda *s: torch.randn(*s, dtype=torch.bfloat16) * 0.05)(B, Hkv, Sk, D)),
    }

def reference(q, k, v):
    B, Hq, Sq, D = q.shape
    Hkv = k.shape[1]
    rep = Hq // Hkv
    k = (lambda x, n, axis: torch.repeat_interleave(x, n, dim=axis))(k, rep, axis=1)
    v = (lambda x, n, axis: torch.repeat_interleave(x, n, dim=axis))(v, rep, axis=1)
    scale = D ** -0.5
    scores = torch.einsum("bhqd,bhkd->bhqk", q, k) * scale
    p = _softmax(scores, axis=-1)
    return torch.einsum("bhqk,bhkd->bhqd", p, v)
```

```python
import re


def R(kind, lo, n=1):
    return [f"{kind}{i}" for i in range(lo, lo + n)]


def rng(kind, lo, n):
    return f"{kind}{lo}" if n == 1 else f"{kind}[{lo}:{lo + n - 1}]"


class Op:
    __slots__ = ("text", "kind", "reads", "writes", "cost", "pin", "idx", "preds", "succs", "deadline",
                 "pos", "mi", "srcc", "vm_targets", "lgkm_targets", "tag", "early")

    def __init__(self, text, kind, reads=(), writes=(), cost=1, pin=None, srcc=(), tag=None, early=None):
        self.text, self.kind = text, kind
        self.reads, self.writes = list(reads), list(writes)
        self.cost, self.pin, self.srcc, self.tag = cost, pin, list(srcc), tag
        self.early = early
        self.preds, self.succs = {}, []
        self.deadline = 1 << 30
        self.pos = None
        self.mi = None
        self.vm_targets, self.lgkm_targets = [], []


VALU = ("valu", "trans", "perm")
SHADOW = ("ds", "vld", "vst")


def hard_dist(p, c, reg, rel):
    if rel == "raw":
        if p.kind == "mfma":
            if c.kind == "mfma":
                if reg in c.srcc:
                    return 0 if (p.writes == c.srcc) else 10
                return 12
            return 12
        if p.kind in VALU:
            if c.kind == "mfma":
                return 2
            if c.kind == "perm":
                return 2
            if p.kind == "trans" and c.kind != "trans":
                return 1
            if reg.startswith("s") or reg == "vcc":
                if c.kind in VALU:
                    return 2
                if c.kind in ("vld", "vst"):
                    return 5
                return 1
            return 0
        if p.kind == "salu" and reg == "m0":
            return 1
        return 0
    if rel == "waw":
        if p.kind == "mfma" and c.kind != "mfma":
            return 12
        if p.kind == "mfma" and c.kind == "mfma":
            return 0 if p.writes == c.writes else 12
        return 0
    if rel == "war":
        if p.kind == "mfma" and reg in p.srcc and c.kind != "mfma":
            return 7
        if p.kind == "vst":
            return 2
        return 0
    raise ValueError(rel)


def soft_dist(p, c, rel):
    if rel == "raw" and p.kind in VALU and c.kind in VALU:
        return 2 if p.kind == "trans" else 1
    return 0


class Sched:
    def __init__(self, budget=6):
        self.ops, self.mfmas = [], []
        self.lastw, self.readers = {}, {}
        self.budget = budget

    def add(self, op):
        op.idx = len(self.ops)
        for r in op.reads:
            p = self.lastw.get(r)
            if p is not None:
                self._dep(p, op, r, "raw")
        for r in op.writes:
            p = self.lastw.get(r)
            if p is not None:
                self._dep(p, op, r, "waw")
            for q in self.readers.get(r, ()):
                if q is not op:
                    self._dep(q, op, r, "war")
        for r in op.reads:
            self.readers.setdefault(r, []).append(op)
        for r in op.writes:
            self.lastw[r] = op
            self.readers[r] = []
        if op.kind == "mfma":
            op.mi = len(self.mfmas)
            self.mfmas.append(op)
        self.ops.append(op)
        return op

    def order(self, p, c):
        self._dep(p, c, "", "ord")

    def _dep(self, p, c, reg, rel):
        h = 0 if rel == "ord" else hard_dist(p, c, reg, rel)
        s = 0 if rel == "ord" else soft_dist(p, c, rel)
        if p in c.preds:
            oh, os_ = c.preds[p]
            c.preds[p] = (max(h, oh), max(s, os_))
        else:
            c.preds[p] = (h, s)
            p.succs.append(c)

    def nm(self):
        return len(self.mfmas)

    def run(self, lgkm_every=2):
        ops = self.ops
        for op in reversed(ops):
            if op.kind == "mfma":
                op.deadline = op.mi
            else:
                d = 1 << 30
                for s in op.succs:
                    d = min(d, s.mi if s.kind == "mfma" else (s.deadline if s.pin is None else min(s.deadline, s.pin + 1)))
                if op.pin is not None:
                    d = min(d, op.pin + 1)
                op.deadline = d
        out = []
        self.state = 0
        self.nds = 0
        self.nvm = 0
        self.ds_done = -1
        self.stats = {"nops": 0, "over": 0}
        self.gapcost = []
        npend = {op: len(op.preds) for op in ops}
        ready = [op for op in ops if op.kind != "mfma" and op.pin is None and npend[op] == 0]
        pinned = {}
        for op in ops:
            if op.pin is not None:
                pinned.setdefault(op.pin, []).append(op)
        seq = {}

        def need(op, soft):
            n = 0
            for p, (h, s) in op.preds.items():
                d = max(h, s) if soft else h
                n = max(n, p.pos + 1 + d - self.state)
            return n

        def emit_text(t, states=1):
            out.append(t)
            self.state += states

        def emit(op):
            for p in op.preds:
                assert p.pos is not None, f"pred not emitted: {p.text} -> {op.text}"
            n = need(op, False)
            while n > 0:
                k = min(n, 16)
                emit_text(f"s_nop {k - 1}", k)
                self.stats["nops"] += k
                self.cur += k
                n -= k
            text = op.text
            if op.kind == "wait":
                parts = []
                if op.vm_targets:
                    k = max(seq[t] for t in op.vm_targets)
                    parts.append(f"vmcnt({min(63, self.nvm - 1 - k)})")
                if op.lgkm_targets:
                    k = max(seq[t] for t in op.lgkm_targets)
                    parts.append(f"lgkmcnt({min(15, self.nds - 1 - k)})")
                    self.ds_done = max(self.ds_done, k)
                text = "s_waitcnt " + " ".join(parts)
            op.pos = self.state
            emit_text(text)
            if op.kind == "ds":
                seq[op] = self.nds
                self.nds += 1
            elif op.kind in ("vld", "vst"):
                seq[op] = self.nvm
                self.nvm += 1
            for s in op.succs:
                npend[s] -= 1
                if npend[s] == 0 and s.kind != "mfma" and s.pin is None:
                    ready.append(s)

        def ds_needed(m):
            return [p for p in m.preds if p.kind == "ds"]

        def lgkm_wait(targets):
            k = max(seq[t] for t in targets)
            if k <= self.ds_done:
                return False
            n = self.nds - 1 - k
            assert n <= 15, "lgkmcnt overflow"
            emit_text(f"s_waitcnt lgkmcnt({n})")
            self.ds_done = k
            return True

        def force(op):
            for p in sorted(op.preds, key=lambda o: o.idx):
                if p.pos is None:
                    assert p.kind != "mfma", f"cycle: {p.text} before {op.text}"
                    force(p)
            if op.pos is None:
                if op in ready:
                    ready.remove(op)
                emit(op)
                self.cur += op.cost

        nm = len(self.mfmas)
        for g in range(-1, nm):
            self.cur = 0
            if g >= 0:
                m = self.mfmas[g]
                for p in sorted(m.preds, key=lambda o: o.idx):
                    if p.pos is None:
                        force(p)
                t = ds_needed(m)
                if t and lgkm_wait(t):
                    self.cur += 1
                late = self.cur
                if self.gapcost:
                    self.gapcost[-1] += late
                self.cur = 0
                emit(m)
                if self.gapcost:
                    self.gapcost[-1] += self.cur
                self.cur = 0
            nsalu = 0
            pins = pinned.get(g, [])
            if g < 0:
                for o in pins + pinned.get(-2, []):
                    force(o)
                pins = []
            scal = [o for o in pins if o.kind in ("salu", "wait", "barrier")]
            if g % lgkm_every == 0 or g < 0:
                t = []
                for k in range(g + 1, min(nm, g + 1 + lgkm_every)):
                    t += [p for p in ds_needed(self.mfmas[k]) if p.pos is not None]
                if t and g >= 0:
                    w = [o for o in scal if o.kind == "wait"]
                    if w and max(seq[x] for x in t) > self.ds_done:
                        w[0].lgkm_targets += t
                    elif lgkm_wait(t):
                        nsalu += 1
            for o in scal:
                force(o)
                self.cur -= o.cost
                nsalu += 1
            self.cur += max(0, nsalu - 1)
            for o in pins:
                if o.kind not in ("salu", "wait", "barrier"):
                    force(o)
            last = g == nm - 1
            while True:
                c = [o for o in ready if o.kind in SHADOW and need(o, False) <= 0 and (o.early is None or o.early <= g)
                     and (self.cur + o.cost <= self.budget or self.cur <= 1)]
                if not c:
                    break
                o = min(c, key=lambda o: (o.deadline, o.idx))
                ready.remove(o)
                emit(o)
                self.cur += o.cost
            while not last:
                room = self.budget - self.cur
                urgent = [o for o in ready if o.deadline <= g + 1]
                cand = [o for o in ready if o.kind not in SHADOW and o.cost <= room and (o.early is None or o.early <= g)]
                pick = None
                for soft in (True, False):
                    c = [o for o in cand if need(o, soft) <= 0]
                    if c:
                        pick = min(c, key=lambda o: (o.deadline, o.idx))
                        break
                if pick is None and urgent:
                    c = [o for o in urgent if need(o, False) <= 0] or urgent
                    pick = min(c, key=lambda o: (need(o, True), o.idx))
                if pick is None:
                    break
                ready.remove(pick)
                emit(pick)
                self.cur += pick.cost
            if last:
                while ready:
                    c = [o for o in ready if need(o, True) <= 0] or [o for o in ready if need(o, False) <= 0] or ready
                    o = min(c, key=lambda o: (o.kind not in SHADOW, need(o, False), o.idx))
                    ready.remove(o)
                    emit(o)
                    self.cur += o.cost
            self.gapcost.append(self.cur)
        for op in ops:
            assert op.pos is not None, f"not emitted: {op.text}"
        self.stats["over"] = sum(max(0, c - self.budget) for c in self.gapcost[1:-1])
        self.stats["tail"] = self.gapcost[-1]
        return out
```

```python
import struct
import sys
from sched import Op, Sched, R, rng

NAME = "standalone__gqa_softmax__near_ridge"
HEAD_BYTES = 384 * 256
KT = 8192
VBASE = 12 * KT


def f32(x):
    return struct.unpack("<I", struct.pack("<f", x))[0]


C_SCALE = 1.4426950408889634 * (128 ** -0.5)

S_Q, S_K, S_V, S_O = 4, 8, 12, 16
S_C, S_NC, S_WL, S_MODE, S_FAIL, S_THR = 20, 21, 22, 23, 24, 26
S_T = 32
S_ST2 = 44
S_STAMP = 48
V_O = {"X": 0, "Y": 64}
V_S = {"X": 128, "Y": 160}
V_P = {"X": 192, "Y": 200}
V_KA, V_VA = 208, 216
V_KD0, V_KD1, V_VD, V_QO, V_OO = 220, 221, 222, 223, 224
V_L = {"X": 225, "Y": 227}
V_MC = {"X": 229, "Y": 230}
V_MPRE = 231
V_T = {"X": 234, "Y": 237}
A_VREG = 0
A_Q = {0: 128, 1: 160, 2: 192}
A_RING, NRING = 224, 8
STREAM = {0: "X", 1: "Y", 2: "X"}


class Cfg:
    D = 6
    PF = 3
    ld = ""
    qf = ""
    st = "sc1"
    stamps = ()
    stamp_dst = "ws"
    nres = 4
    tailmerge = 1
    thr = 2.0 ** 24
    budget = 6
    name = NAME

    def __init__(self, **kw):
        for k, v in kw.items():
            assert hasattr(self, k), k
            setattr(self, k, v)


def fl(x):
    return (" " + x.replace("+", " ")) if x else ""


class Gen:
    def __init__(self, cfg):
        self.c = cfg
        self.s = Sched(cfg.budget)
        self.ring = 0
        self.kwin = 0
        self.frag_jobs = []

    def groups(self):
        n = self.c.nres
        g = [[(0, t)] for t in range(12)]
        g += [[(1, t)] for t in range(n)]
        g += [[(1, t), (2, t)] for t in range(n, 12)]
        g += [[(2, t)] for t in range(n)]
        return g

    def dma_ops(self, which, t):
        c = self.c
        if which == "K":
            lds, srd, vo = t * KT, S_K, (V_KD0, V_KD1)
        else:
            lds, srd, vo = self.vslot(t), S_V, (V_VD, V_VD)
        m0 = Op(f"s_add_u32 m0, s{S_WL}, {lds}", "salu", [f"s{S_WL}"], ["m0", "scc"])
        ld = [Op(f"buffer_load_dwordx4 v{vo[j]}, s[{srd}:{srd + 3}], s{S_T + t} offen offset:{1024 * j}{fl(c.ld)} lds",
                 "vld", [f"v{vo[j]}", "m0"], []) for j in range(2)]
        return m0, ld

    def vslot(self, t):
        return VBASE + (t % (12 - self.c.nres)) * KT

    def q_ops(self, blk):
        so = "0" if blk == 0 else f"s{S_T + 4 * blk}"
        return [Op(f"buffer_load_dwordx4 {rng('a', A_Q[blk] + 4 * s, 4)}, v{V_QO}, s[{S_Q}:{S_Q + 3}], {so} offen offset:{32 * s}{fl(self.c.qf)}",
                   "vld", [f"v{V_QO}"], R("a", A_Q[blk] + 4 * s, 4)) for s in range(8)]

    def ring_slot(self):
        r = A_RING + 4 * self.ring
        self.ring = (self.ring + 1) % NRING
        return r

    def k_frag(self, t, s):
        win = 1 if t >= 8 else 0
        pin = max(-1, self.s.nm() - self.c.D)
        if win != self.kwin:
            for i in range(8):
                op = "v_add_u32" if win else "v_subrev_u32"
                self.s.add(Op(f"{op} v{V_KA + i}, s{S_T + 8}, v{V_KA + i}", "valu", [f"v{V_KA + i}"], [f"v{V_KA + i}"]))
            self.kwin = win
        r = self.ring_slot()
        o = self.s.add(Op(f"ds_read_b128 {rng('a', r, 4)}, v{V_KA + s} offset:{(t % 8) * KT}", "ds",
                          [f"v{V_KA + s}"], R("a", r, 4), pin=pin))
        if ("K", t) in self.landed:
            self.s.order(self.landed[("K", t)], o)
        return r

    def v_frag(self, t, ks, j, first_pass):
        res = t < self.c.nres
        r = A_VREG + 32 * t + 16 * ks + 4 * j if res else None
        if res and not first_pass:
            return r
        if not res:
            r = self.ring_slot()
        pin = max(-1, self.s.nm() - self.c.D)
        for jj in range(2):
            off = self.vslot(t) - VBASE + ks * 4096 + jj * 2048
            o = self.s.add(Op(f"ds_read_b64_tr_b16 {rng('a', r + 2 * jj, 2)}, v{V_VA + j} offset:{off}", "ds",
                              [f"v{V_VA + j}"], R("a", r + 2 * jj, 2), pin=pin))
            if ("V", t) in self.landed:
                self.s.order(self.landed[("V", t)], o)
        return r

    def sbuf(self, blk, t):
        return V_S[STREAM[blk]] + 16 * (self.ucount[(blk, t)] % 2)

    def qk(self, grp):
        t = grp[0][1]
        for s in range(8):
            a = self.k_frag(t, s)
            for blk, _ in grp:
                d = self.sbuf(blk, t)
                q = A_Q[blk] + 4 * s
                cs = "0" if s == 0 else rng("v", d, 16)
                srcc = [] if s == 0 else R("v", d, 16)
                m = self.s.add(Op(f"v_mfma_f32_32x32x16_bf16 {rng('v', d, 16)}, {rng('a', a, 4)}, {rng('a', q, 4)}, {cs}",
                                  "mfma", R("a", a, 4) + R("a", q, 4) + srcc, R("v", d, 16), srcc=srcc))
                if (blk, s) in self.qwait:
                    self.s.order(self.qwait[(blk, s)], m)
                self.hook(m)

    def pv_one(self, units, ks, j):
        t = units[0][1]
        a = self.v_frag(t, ks, j, units[0][0] == 0)
        for blk, _ in units:
            st = STREAM[blk]
            d = V_O[st] + 16 * j
            p = self.pbuf(blk, t) + 4 * ks
            first = self.ucount[(blk, t)] == 0 and ks == 0
            cs = "0" if first else rng("v", d, 16)
            srcc = [] if first else R("v", d, 16)
            m = self.s.add(Op(f"v_mfma_f32_32x32x16_bf16 {rng('v', d, 16)}, {rng('a', a, 4)}, {rng('v', p, 4)}, {cs}",
                              "mfma", R("a", a, 4) + R("v", p, 4) + srcc, R("v", d, 16), srcc=srcc))
            self.hook(m)

    def pbuf(self, blk, t):
        if self.c.tailmerge and blk == 2 and t == self.c.nres - 1:
            return V_P["Y"]
        return V_P[STREAM[blk]]

    def pv(self, grp):
        for ks in range(2):
            for j in range(4):
                self.pv_one(grp, ks, j)

    def softmax(self, grp):
        add = self.s.add
        for blk, t in grp:
            st = STREAM[blk]
            sb, l, mc, tmp = self.sbuf(blk, t), V_L[st], V_MC[st], V_T[st]
            if self.ucount[(blk, t)] == 0:
                sv = [f"v{sb + i}" for i in range(16)]
                t0, t1 = f"v{tmp}", f"v{tmp + 1}"
                add(Op(f"v_max3_f32 {t0}, {sv[0]}, {sv[1]}, {sv[2]}", "valu", sv[0:3], [t0]))
                add(Op(f"v_max3_f32 {t1}, {sv[3]}, {sv[4]}, {sv[5]}", "valu", sv[3:6], [t1]))
                for i in range(5):
                    tt = t0 if i % 2 == 0 else t1
                    add(Op(f"v_max3_f32 {tt}, {tt}, {sv[6 + 2 * i]}, {sv[7 + 2 * i]}", "valu", [tt, sv[6 + 2 * i], sv[7 + 2 * i]], [tt]))
                add(Op(f"v_max3_f32 {t0}, {t0}, {t1}, v{V_MPRE + blk}", "valu", [t0, t1, f"v{V_MPRE + blk}"], [t0]))
                add(Op(f"v_mov_b32 {t1}, {t0}", "valu", [t0], [t1]))
                add(Op(f"v_permlane32_swap_b32 {t0}, {t1}", "perm", [t0, t1], [t0, t1], cost=2))
                add(Op(f"v_max_f32 {t0}, {t0}, {t1}", "valu", [t0, t1], [t0]))
                add(Op(f"v_mul_f32 v{mc}, s{S_NC}, {t0}", "valu", [t0], [f"v{mc}"]))
        for ks in range(2):
            for i in range(4):
                for blk, t in grp:
                    st = STREAM[blk]
                    sb, l, mc = self.sbuf(blk, t), V_L[st], V_MC[st]
                    first = self.ucount[(blk, t)] == 0 and ks == 0 and i == 0
                    e = [f"v{sb + 8 * ks + 2 * i}", f"v{sb + 8 * ks + 2 * i + 1}"]
                    for x in e:
                        add(Op(f"v_fma_f32 {x}, {x}, s{S_C}, v{mc}", "valu", [x, f"v{mc}"], [x]))
                    for x in e:
                        add(Op(f"v_exp_f32 {x}, {x}", "trans", [x], [x], cost=2))
                    pr = f"v{self.pbuf(blk, t) + 4 * ks + i}"
                    add(Op(f"v_cvt_pk_bf16_f32 {pr}, {e[0]}, {e[1]}", "valu", e, [pr]))
                    for k, x in enumerate(e):
                        if first:
                            add(Op(f"v_mov_b32 v{l + k}, {x}", "valu", [x], [f"v{l + k}"]))
                        else:
                            add(Op(f"v_add_f32 v{l + k}, v{l + k}, {x}", "valu", [x, f"v{l + k}"], [f"v{l + k}"]))

    def epi_head(self, blk):
        add = self.s.add
        st = STREAM[blk]
        l, tmp = V_L[st], V_T[st]
        a, b, r = f"v{l}", f"v{l + 1}", f"v{tmp + 2}"
        add(Op(f"v_add_f32 {a}, {a}, {b}", "valu", [a, b], [a]))
        add(Op(f"v_mov_b32 {b}, {a}", "valu", [a], [b]))
        add(Op(f"v_permlane32_swap_b32 {a}, {b}", "perm", [a, b], [a, b], cost=2))
        add(Op(f"v_add_f32 {a}, {a}, {b}", "valu", [a, b], [a]))
        add(Op(f"v_rcp_f32 {r}, {a}", "trans", [a], [r], cost=2))
        add(Op(f"v_cmp_nge_f32 vcc, s{S_THR}, {a}", "valu", [a], ["vcc"]))
        add(Op(f"s_or_b64 s[{S_FAIL}:{S_FAIL + 1}], s[{S_FAIL}:{S_FAIL + 1}], vcc", "salu2", ["vcc", f"s{S_FAIL}"], [f"s{S_FAIL}", "scc"]))

    def epi_tile(self, blk, j):
        add = self.s.add
        st = STREAM[blk]
        o, r = V_O[st] + 16 * j, f"v{V_T[st] + 2}"
        for i in range(8):
            x, y = f"v{o + 2 * i}", f"v{o + 2 * i + 1}"
            add(Op(f"v_mul_f32 {x}, {r}, {x}", "valu", [x, r], [x]))
            add(Op(f"v_mul_f32 {y}, {r}, {y}", "valu", [y, r], [y]))
            add(Op(f"v_cvt_pk_bf16_f32 v{o + i}, {x}, {y}", "valu", [x, y], [f"v{o + i}"]))
        for i in range(4):
            x, y = f"v{o + i}", f"v{o + 4 + i}"
            add(Op(f"v_permlane16_swap_b32 {x}, {y}", "perm", [x, y], [x, y], cost=2))
        for h in range(2):
            so = (f"s{S_T + 4 * blk}" if blk else "0") if h == 0 else f"s{S_ST2 + blk}"
            add(Op(f"buffer_store_dwordx4 {rng('v', o + 4 * h, 4)}, v{V_OO}, s[{S_O}:{S_O + 3}], {so} offen offset:{64 * j}{fl(self.c.st)}",
                   "vst", R("v", o + 4 * h, 4) + [f"v{V_OO}"], [], cost=5))

    def hook(self, m):
        if m.mi in self.c.stamps:
            k = list(self.c.stamps).index(m.mi)
            self.s.add(Op(f"s_memrealtime s[{S_STAMP + 4 + 2 * k}:{S_STAMP + 5 + 2 * k}]", "salu", [], [], pin=m.mi))

    def body(self):
        c, s = self.c, self.s
        G = self.groups()
        self.ucount = {}
        cnt = {0: 0, 1: 0, 2: 0}
        for g in G:
            for u in g:
                self.ucount[u] = cnt[u[0]]
                cnt[u[0]] += 1
        self.landed, self.qwait = {}, {}
        ld = {}

        def put_dma(which, t, gap_m0, gaps):
            m0, l = self.dma_ops(which, t)
            m0.pin = gap_m0
            s.add(m0)
            for o, gp in zip(l, gaps):
                o.pin = gp
                s.add(o)
            ld[(which, t)] = l
            return m0

        put_dma("K", 0, -1, (-1, -1))
        qa = self.q_ops(0)
        for o in qa:
            o.pin = -1
            s.add(o)
        put_dma("K", 1, -1, (-1, -1))
        put_dma("V", 0, -1, (-1, -1))
        self.pre = None
        queue = []
        for t in range(2, 12):
            queue += [("K", t), ("V", t - 1)]
        queue += [("V", 11)] + [("Q", 1, h) for h in range(4)] + [("Q", 2, h) for h in range(4)]
        qops = {1: self.q_ops(1), 2: self.q_ops(2)}

        def sync(gap, items):
            w = Op("", "wait", pin=gap)
            w.vm_targets = [o for it in items for o in ld[it]]
            s.add(w)
            for o in w.vm_targets:
                s.order(o, w)
            b = s.add(Op("s_barrier", "barrier", pin=gap))
            s.order(w, b)
            for it in items:
                self.landed[it] = b
            return b

        def issue(n, gap, bar):
            for _ in range(n):
                if not queue:
                    return
                it = queue.pop(0)
                if it[0] == "Q":
                    for k, o in enumerate(qops[it[1]][2 * it[2]:2 * it[2] + 2]):
                        o.pin = gap + 1 + k
                        s.add(o)
                    gap += 2
                else:
                    m0 = put_dma(it[0], it[1], gap + (gap % 2 == 0), (gap + 1 + (gap % 2 == 0), gap + 2 + (gap % 2 == 0)))
                    s.order(bar, m0)
                    gap += 3 + (gap % 2 == 0)

        b = sync(-1, [("K", 0)])
        for _ in range(2 * (c.PF - 2)):
            it = queue.pop(0)
            m0 = put_dma(it[0], it[1], -1, (-1, -1))
            s.order(b, m0)
        self.late_pre = []
        for k in (3, 7):
            w = Op("", "wait", pin=-2 if k == 3 else 1)
            w.vm_targets = qa[:k + 1]
            s.add(w)
            for o in w.vm_targets:
                s.order(o, w)
            self.qwait[(0, k - 3)] = w

        def qwait(blk, gap):
            for k in (3, 7):
                w = Op("", "wait", pin=gap + (0 if k == 3 else 4))
                w.vm_targets = qops[blk][:k + 1]
                s.add(w)
                for o in w.vm_targets:
                    s.order(o, w)
                self.qwait[(blk, k - 3)] = w

        starts = {}
        pos = 8
        for i in range(len(G)):
            starts[i + 1] = pos
            if i + 1 < len(G):
                pos += 8 * len(G[i + 1])
            pos += 8 * len(G[i])

        def sync_for_step(t):
            gap = starts[t + 1] - c.D - 1
            gap -= (gap % 2 == 0)
            items = ([("K", t + 1)] if t + 1 < 12 else []) + [("V", t)]
            bar = sync(gap, items)
            issue(2 if t else 4, gap + 1, bar)

        sync_for_step(0)
        self.qk(G[0])
        merged = False
        for i in range(len(G)):
            last = i == len(G) - 1
            if i + 1 <= 11:
                sync_for_step(i + 1)
            elif queue:
                issue(2, starts[i + 1] + 1, b)
            if not last:
                for blk, t in G[i + 1]:
                    if blk and self.ucount[(blk, t)] == 0:
                        gap = starts[i + 1] - 1
                        qwait(blk, gap - (gap % 2 == 0))
                self.qk(G[i + 1])
            self.softmax(G[i])
            if c.tailmerge and i == len(G) - 2:
                continue
            done = [blk for blk, t in G[i] if self.ucount[(blk, t)] == 11]
            for blk in done:
                self.epi_head(blk)
            if c.tailmerge and last:
                for j in range(4):
                    for g in (G[i - 1], G[i]):
                        for ks in range(2):
                            self.pv_one(g, ks, j)
                    self.epi_tile(2, j)
            else:
                self.pv(G[i])
                for blk in done:
                    for j in range(4):
                        self.epi_tile(blk, j)
        return s.run()

    def kernel(self):
        c = self.c
        k = c.name + "_kernel"
        L = []
        A = L.append
        A(f"; @launch grid=(256,1,1) block=(256,1,1) lds=163840")
        A('.amdgcn_target "amdgcn-amd-amdhsa--gfx950"')
        A(".text")
        A(f".globl {k}")
        A(".p2align 8")
        A(f".type {k},@function")
        A(f"{k}:")
        if c.stamps:
            A(f"s_memrealtime s[{S_STAMP}:{S_STAMP + 1}]")
        A("s_cmp_ge_u32 s2, 256")
        A("s_cbranch_scc1 L_end")
        A("s_load_dwordx4 s[64:67], s[0:1], 0")
        A("s_load_dwordx4 s[68:71], s[0:1], 16")
        A("s_and_b32 s3, s2, 7")
        A("s_lshr_b32 s72, s2, 3")
        A("s_lshl_b32 s3, s3, 5")
        A("s_add_u32 s3, s3, s72")
        A("s_lshr_b32 s72, s3, 1")
        A(f"s_mul_i32 s73, s3, {HEAD_BYTES}")
        A(f"s_mul_i32 s72, s72, {HEAD_BYTES}")
        A("v_lshrrev_b32 v1, 6, v0")
        A("v_and_b32 v2, 63, v0")
        A("v_lshrrev_b32 v3, 4, v2")
        A(f"v_readfirstlane_b32 s{S_WL}, v1")
        A("v_and_b32 v4, 15, v2")
        A("v_and_b32 v5, 1, v1")
        A("v_lshl_add_u32 v5, v5, 3, v3")
        A("v_xor_b32 v5, v5, v4")
        A("v_lshl_add_u32 v6, v1, 3, v3")
        A("v_lshlrev_b32 v6, 8, v6")
        A(f"v_lshl_add_u32 v{V_KD0}, v5, 4, v6")
        A(f"v_xor_b32 v{V_KD1}, 64, v{V_KD0}")
        A("v_lshlrev_b32 v5, 2, v3")
        A("v_xor_b32 v5, v5, v4")
        A(f"v_lshl_add_u32 v{V_VD}, v5, 4, v6")
        A("v_and_b32 v7, 31, v2")
        A("v_lshrrev_b32 v8, 5, v2")
        A("v_lshl_add_u32 v5, v1, 5, v7")
        A("v_lshlrev_b32 v5, 8, v5")
        A(f"v_lshl_add_u32 v{V_QO}, v8, 4, v5")
        for t in range(12):
            A(f"s_mov_b32 s{S_T + t}, {t * KT}")
        A(f"s_lshl_b32 s{S_WL}, s{S_WL}, 11")
        for r in (S_Q, S_K, S_V, S_O):
            A(f"s_mov_b32 s{r + 2}, {HEAD_BYTES}")
            A(f"s_mov_b32 s{r + 3}, 0x00020000")
        A(f"s_mov_b32 s{S_MODE}, 0")
        for b in range(3):
            A(f"v_mov_b32 v{V_MPRE + b}, 0xff800000")
        A("v_lshl_add_u32 v5, v1, 5, v4")
        A("v_lshlrev_b32 v5, 8, v5")
        A(f"v_lshl_add_u32 v{V_OO}, v3, 4, v5")
        A("v_xor_b32 v5, v8, v4")
        A("v_lshlrev_b32 v5, 4, v5")
        A(f"v_lshl_add_u32 v{V_KA}, v7, 8, v5")
        for i in range(1, 8):
            A(f"v_xor_b32 v{V_KA + i}, {32 * i}, v{V_KA}")
        A("v_lshrrev_b32 v5, 2, v4")
        A("v_lshl_add_u32 v6, v8, 2, v5")
        A("v_lshlrev_b32 v6, 8, v6")
        A("v_lshl_add_u32 v6, v5, 6, v6")
        A("v_and_b32 v9, 1, v2")
        A("v_lshl_add_u32 v6, v9, 5, v6")
        A("v_and_b32 v9, 1, v3")
        A("v_lshl_add_u32 v6, v9, 4, v6")
        A("v_bfe_u32 v9, v2, 1, 1")
        A("v_lshl_add_u32 v6, v9, 3, v6")
        A(f"v_add_u32 v{V_VA}, {VBASE}, v6")
        for j in range(1, 4):
            A(f"v_xor_b32 v{V_VA + j}, {64 * j}, v{V_VA}")
        A(f"s_mov_b32 s{S_C}, {f32(C_SCALE):#x}")
        A(f"s_mov_b32 s{S_NC}, {f32(-C_SCALE):#x}")
        A(f"s_mov_b32 s{S_THR}, {f32(c.thr):#x}")
        for b in range(3):
            A(f"s_mov_b32 s{S_ST2 + b}, {b * 32768 + 4096}")
        A("s_waitcnt lgkmcnt(0)")
        for r, p, off in ((S_K, 66, 72), (S_Q, 64, 73), (S_V, 68, 72), (S_O, 70, 73)):
            A(f"s_add_u32 s{r}, s{p}, s{off}")
            A(f"s_addc_u32 s{r + 1}, s{p + 1}, 0")
        if c.stamps:
            A(f"s_memrealtime s[{S_STAMP + 2}:{S_STAMP + 3}]")
        A("L_start:")
        A(f"s_mov_b64 s[{S_FAIL}:{S_FAIL + 1}], 0")
        L += self.body()
        assert self.kwin == 0
        ns = len(c.stamps)
        if c.stamps:
            A(f"s_memrealtime s[{S_STAMP + 4 + 2 * ns}:{S_STAMP + 5 + 2 * ns}]")
        A("s_nop 1")
        A(f"s_cmp_lg_u64 s[{S_FAIL}:{S_FAIL + 1}], 0")
        A("s_cselect_b32 s74, 1, 0")
        A(f"s_lshr_b32 s75, s{S_WL}, 9")
        A("v_mov_b32 v128, s74")
        A("v_mov_b32 v129, s75")
        A("v_mov_b32 v130, 0")
        A("s_barrier")
        A("ds_write_b32 v129, v128")
        A("s_waitcnt lgkmcnt(0)")
        A("s_barrier")
        A("ds_read_b128 v[132:135], v130")
        A("s_waitcnt lgkmcnt(0)")
        A("v_or_b32 v132, v132, v133")
        A("v_or3_b32 v132, v132, v134, v135")
        A("s_nop 0")
        A("v_readfirstlane_b32 s74, v132")
        A("s_nop 0")
        A(f"s_andn2_b32 s74, s74, s{S_MODE}")
        A("s_cbranch_scc1 L_fallback")
        if c.stamps:
            A("s_waitcnt vmcnt(0)")
            A(f"s_memrealtime s[{S_STAMP + 6 + 2 * ns}:{S_STAMP + 7 + 2 * ns}]")
            A(f"s_load_dwordx2 s[76:77], s[0:1], {40 if c.stamp_dst == 'ws' else 32}")
            A("s_waitcnt lgkmcnt(0)")
            A("s_mov_b32 s78, " + ("0x10000000" if c.stamp_dst == "ws" else "256"))
            A("s_mov_b32 s79, 0x00020000")
            A(f"s_lshr_b32 s75, s{S_WL}, 5")
            A("s_lshl_b32 s74, s2, 8")
            A("s_add_u32 s74, s74, s75")
            A("v_mov_b32 v129, s74")
            for i in range(ns + 4):
                A(f"v_mov_b32 v128, s{S_STAMP + 2 * i}")
                A(f"buffer_store_dword v128, v129, s[76:79], 0 offen offset:{4 * i} sc1")
        A("L_end:")
        A("s_endpgm")
        A("L_fallback:")
        A("s_waitcnt vmcnt(0)")
        A(f"v_lshlrev_b32 v140, 16, v{V_QO}")
        A("v_lshrrev_b32 v140, 16, v140")
        A("v_and_b32 v140, 0x1fff, v140")
        for b in range(3):
            for f in range(8):
                A(f"buffer_load_dwordx4 v[{64 + 4 * f}:{67 + 4 * f}], v{V_QO}, s[{S_Q}:{S_Q + 3}], s{S_T + 4 * b} offen offset:{32 * f}")
            A("s_mov_b32 s74, 0")
            A(f"L_fb{b}:")
            for f in range(8):
                A(f"buffer_load_dwordx4 v[{96 + 4 * f}:{99 + 4 * f}], v140, s[{S_K}:{S_K + 3}], s74 offen offset:{32 * f}")
            A("s_waitcnt vmcnt(0)")
            for f in range(8):
                A(f"v_mfma_f32_32x32x16_bf16 v[0:15], v[{96 + 4 * f}:{99 + 4 * f}], v[{64 + 4 * f}:{67 + 4 * f}], {'0' if f == 0 else 'v[0:15]'}")
            A("s_nop 15")
            for i in range(8):
                A(f"v_max3_f32 v{V_MPRE + b}, v{V_MPRE + b}, v{2 * i}, v{2 * i + 1}")
            A(f"s_add_u32 s74, s74, {KT}")
            A(f"s_cmp_lt_u32 s74, {12 * KT}")
            A(f"s_cbranch_scc1 L_fb{b}")
        A(f"s_mov_b32 s{S_MODE}, 1")
        A("s_barrier")
        A("s_branch L_start")
        body = "\n".join(x if x.endswith(":") or x.startswith((";", ".")) else "    " + x for x in L)
        body += f"""
.section .rodata,"a"
.p2align 6
.amdhsa_kernel {k}
  .amdhsa_next_free_vgpr 512
  .amdhsa_next_free_sgpr 96
  .amdhsa_accum_offset 256
  .amdhsa_group_segment_fixed_size 0
  .amdhsa_kernarg_size 48
  .amdhsa_user_sgpr_count 2
  .amdhsa_user_sgpr_kernarg_segment_ptr 1
  .amdhsa_system_sgpr_workgroup_id_x 1
  .amdhsa_float_denorm_mode_32 3
.end_amdhsa_kernel
"""
        return body


def parse(args):
    kw = {}
    for a in args:
        k, v = a.split("=", 1)
        if k == "stamps":
            v = tuple(int(x) for x in v.split(",") if x)
        elif k in ("D", "PF", "nres", "tailmerge", "budget"):
            v = int(v)
        elif k == "thr":
            v = float(v)
        kw[k] = v
    return kw


if __name__ == "__main__":
    out = sys.argv[1]
    g = Gen(Cfg(**parse(sys.argv[2:])))
    txt = g.kernel()
    open(out, "w").write(txt)
    gc = g.s.gapcost
    print(out, "mfma", g.s.nm(), g.s.stats, "pre", gc[0], file=sys.stderr)
    for i in range(1, len(gc), 32):
        print(f"{i - 1:4d} " + "".join(str(min(9, x)) for x in gc[i:i + 32]), file=sys.stderr)
```

```python
import struct
import sys
from sched import Op, Sched, R, rng

NAME = "standalone__gqa_softmax__near_ridge"
HEAD_BYTES = 384 * 256
KT = 8192
VBASE = 12 * KT


def f32(x):
    return struct.unpack("<I", struct.pack("<f", x))[0]


C_SCALE = 1.4426950408889634 * (128 ** -0.5)

S_Q, S_K, S_V, S_O = 4, 8, 12, 16
S_C, S_NC, S_WL, S_MODE, S_FAIL, S_THR = 20, 21, 22, 23, 24, 26
S_T = 32
S_ST2 = 44
S_STAMP = 48
V_O = {"X": 0, "Y": 64}
V_S = {"X": 128, "Y": 160}
V_P = {"X": 192, "Y": 200}
V_KA, V_VA = 208, 216
V_KD0, V_KD1, V_VD, V_QO, V_OO = 220, 221, 222, 223, 224
V_L = {"X": 225, "Y": 227}
V_MC = {"X": 229, "Y": 230}
V_MPRE = 231
V_T = {"X": 234, "Y": 237}
A_VREG = 0
A_Q = {0: 128, 1: 160, 2: 192}
A_RING, NRING = 224, 8
STREAM = {0: "X", 1: "Y", 2: "X"}


class Cfg:
    D = 6
    PF = 3
    ld = ""
    qf = ""
    st = "sc1"
    stamps = ()
    stamp_dst = "ws"
    nres = 4
    tailmerge = 1
    thr = 2.0 ** 24
    budget = 6
    name = NAME
    pad = -1

    def __init__(self, **kw):
        for k, v in kw.items():
            assert hasattr(self, k), k
            setattr(self, k, v)


def fl(x):
    return (" " + x.replace("+", " ")) if x else ""


class Gen:
    def __init__(self, cfg):
        self.c = cfg
        self.s = Sched(cfg.budget)
        self.ring = 0
        self.kwin = 0
        self.frag_jobs = []

    def groups(self):
        n = self.c.nres
        g = [[(0, t)] for t in range(12)]
        g += [[(1, t)] for t in range(n)]
        g += [[(1, t), (2, t)] for t in range(n, 12)]
        g += [[(2, t)] for t in range(n)]
        return g

    def dma_ops(self, which, t):
        c = self.c
        if which == "K":
            lds, srd, vo = t * KT, S_K, (V_KD0, V_KD1)
        else:
            lds, srd, vo = self.vslot(t), S_V, (V_VD, V_VD)
        m0 = Op(f"s_add_u32 m0, s{S_WL}, {lds}", "salu", [f"s{S_WL}"], ["m0", "scc"])
        ld = [Op(f"buffer_load_dwordx4 v{vo[j]}, s[{srd}:{srd + 3}], s{S_T + t} offen offset:{1024 * j}{fl(c.ld)} lds",
                 "vld", [f"v{vo[j]}", "m0"], []) for j in range(2)]
        return m0, ld

    def vslot(self, t):
        return VBASE + (t % (12 - self.c.nres)) * KT

    def q_ops(self, blk):
        so = "0" if blk == 0 else f"s{S_T + 4 * blk}"
        return [Op(f"buffer_load_dwordx4 {rng('a', A_Q[blk] + 4 * s, 4)}, v{V_QO}, s[{S_Q}:{S_Q + 3}], {so} offen offset:{32 * s}{fl(self.c.qf)}",
                   "vld", [f"v{V_QO}"], R("a", A_Q[blk] + 4 * s, 4)) for s in range(8)]

    def ring_slot(self):
        r = A_RING + 4 * self.ring
        self.ring = (self.ring + 1) % NRING
        return r

    def k_frag(self, t, s):
        win = 1 if t >= 8 else 0
        pin = max(-1, self.s.nm() - self.c.D)
        if win != self.kwin:
            for i in range(8):
                op = "v_add_u32" if win else "v_subrev_u32"
                self.s.add(Op(f"{op} v{V_KA + i}, s{S_T + 8}, v{V_KA + i}", "valu", [f"v{V_KA + i}"], [f"v{V_KA + i}"]))
            self.kwin = win
        r = self.ring_slot()
        o = self.s.add(Op(f"ds_read_b128 {rng('a', r, 4)}, v{V_KA + s} offset:{(t % 8) * KT}", "ds",
                          [f"v{V_KA + s}"], R("a", r, 4), pin=pin))
        if ("K", t) in self.landed:
            self.s.order(self.landed[("K", t)], o)
        return r

    def v_frag(self, t, ks, j, first_pass):
        res = t < self.c.nres
        r = A_VREG + 32 * t + 16 * ks + 4 * j if res else None
        if res and not first_pass:
            return r
        if not res:
            r = self.ring_slot()
        pin = max(-1, self.s.nm() - self.c.D)
        for jj in range(2):
            off = self.vslot(t) - VBASE + ks * 4096 + jj * 2048
            o = self.s.add(Op(f"ds_read_b64_tr_b16 {rng('a', r + 2 * jj, 2)}, v{V_VA + j} offset:{off}", "ds",
                              [f"v{V_VA + j}"], R("a", r + 2 * jj, 2), pin=pin))
            if ("V", t) in self.landed:
                self.s.order(self.landed[("V", t)], o)
        return r

    def sbuf(self, blk, t):
        return V_S[STREAM[blk]] + 16 * (self.ucount[(blk, t)] % 2)

    def qk(self, grp):
        t = grp[0][1]
        for s in range(8):
            a = self.k_frag(t, s)
            for blk, _ in grp:
                d = self.sbuf(blk, t)
                q = A_Q[blk] + 4 * s
                cs = "0" if s == 0 else rng("v", d, 16)
                srcc = [] if s == 0 else R("v", d, 16)
                m = self.s.add(Op(f"v_mfma_f32_32x32x16_bf16 {rng('v', d, 16)}, {rng('a', a, 4)}, {rng('a', q, 4)}, {cs}",
                                  "mfma", R("a", a, 4) + R("a", q, 4) + srcc, R("v", d, 16), srcc=srcc))
                if (blk, s) in self.qwait:
                    self.s.order(self.qwait[(blk, s)], m)
                self.hook(m)

    def pv_one(self, units, ks, j):
        t = units[0][1]
        a = self.v_frag(t, ks, j, units[0][0] == 0)
        for blk, _ in units:
            st = STREAM[blk]
            d = V_O[st] + 16 * j
            p = self.pbuf(blk, t) + 4 * ks
            first = self.ucount[(blk, t)] == 0 and ks == 0
            cs = "0" if first else rng("v", d, 16)
            srcc = [] if first else R("v", d, 16)
            m = self.s.add(Op(f"v_mfma_f32_32x32x16_bf16 {rng('v', d, 16)}, {rng('a', a, 4)}, {rng('v', p, 4)}, {cs}",
                              "mfma", R("a", a, 4) + R("v", p, 4) + srcc, R("v", d, 16), srcc=srcc))
            self.hook(m)

    def pbuf(self, blk, t):
        if self.c.tailmerge and blk == 2 and t == self.c.nres - 1:
            return V_P["Y"]
        return V_P[STREAM[blk]]

    def pv(self, grp):
        for ks in range(2):
            for j in range(4):
                self.pv_one(grp, ks, j)

    def softmax(self, grp):
        add = self.s.add
        for blk, t in grp:
            st = STREAM[blk]
            sb, l, mc, tmp = self.sbuf(blk, t), V_L[st], V_MC[st], V_T[st]
            if self.ucount[(blk, t)] == 0:
                sv = [f"v{sb + i}" for i in range(16)]
                t0, t1 = f"v{tmp}", f"v{tmp + 1}"
                add(Op(f"v_max3_f32 {t0}, {sv[0]}, {sv[1]}, {sv[2]}", "valu", sv[0:3], [t0]))
                add(Op(f"v_max3_f32 {t1}, {sv[3]}, {sv[4]}, {sv[5]}", "valu", sv[3:6], [t1]))
                for i in range(5):
                    tt = t0 if i % 2 == 0 else t1
                    add(Op(f"v_max3_f32 {tt}, {tt}, {sv[6 + 2 * i]}, {sv[7 + 2 * i]}", "valu", [tt, sv[6 + 2 * i], sv[7 + 2 * i]], [tt]))
                add(Op(f"v_max3_f32 {t0}, {t0}, {t1}, v{V_MPRE + blk}", "valu", [t0, t1, f"v{V_MPRE + blk}"], [t0]))
                add(Op(f"v_mov_b32 {t1}, {t0}", "valu", [t0], [t1]))
                add(Op(f"v_permlane32_swap_b32 {t0}, {t1}", "perm", [t0, t1], [t0, t1], cost=2))
                add(Op(f"v_max_f32 {t0}, {t0}, {t1}", "valu", [t0, t1], [t0]))
                add(Op(f"v_mul_f32 v{mc}, s{S_NC}, {t0}", "valu", [t0], [f"v{mc}"]))
        for ks in range(2):
            for i in range(4):
                for blk, t in grp:
                    st = STREAM[blk]
                    sb, l, mc = self.sbuf(blk, t), V_L[st], V_MC[st]
                    first = self.ucount[(blk, t)] == 0 and ks == 0 and i == 0
                    e = [f"v{sb + 8 * ks + 2 * i}", f"v{sb + 8 * ks + 2 * i + 1}"]
                    for x in e:
                        add(Op(f"v_fma_f32 {x}, {x}, s{S_C}, v{mc}", "valu", [x, f"v{mc}"], [x]))
                    for x in e:
                        add(Op(f"v_exp_f32 {x}, {x}", "trans", [x], [x], cost=2))
                    pr = f"v{self.pbuf(blk, t) + 4 * ks + i}"
                    add(Op(f"v_cvt_pk_bf16_f32 {pr}, {e[0]}, {e[1]}", "valu", e, [pr]))
                    for k, x in enumerate(e):
                        if first:
                            add(Op(f"v_mov_b32 v{l + k}, {x}", "valu", [x], [f"v{l + k}"]))
                        else:
                            add(Op(f"v_add_f32 v{l + k}, v{l + k}, {x}", "valu", [x, f"v{l + k}"], [f"v{l + k}"]))

    def epi_head(self, blk):
        add = self.s.add
        st = STREAM[blk]
        l, tmp = V_L[st], V_T[st]
        a, b, r = f"v{l}", f"v{l + 1}", f"v{tmp + 2}"
        add(Op(f"v_add_f32 {a}, {a}, {b}", "valu", [a, b], [a]))
        add(Op(f"v_mov_b32 {b}, {a}", "valu", [a], [b]))
        add(Op(f"v_permlane32_swap_b32 {a}, {b}", "perm", [a, b], [a, b], cost=2))
        add(Op(f"v_add_f32 {a}, {a}, {b}", "valu", [a, b], [a]))
        add(Op(f"v_rcp_f32 {r}, {a}", "trans", [a], [r], cost=2))
        add(Op(f"v_cmp_nge_f32 vcc, s{S_THR}, {a}", "valu", [a], ["vcc"]))
        add(Op(f"s_or_b64 s[{S_FAIL}:{S_FAIL + 1}], s[{S_FAIL}:{S_FAIL + 1}], vcc", "salu2", ["vcc", f"s{S_FAIL}"], [f"s{S_FAIL}", "scc"]))

    def epi_tile(self, blk, j):
        add = self.s.add
        st = STREAM[blk]
        o, r = V_O[st] + 16 * j, f"v{V_T[st] + 2}"
        for i in range(8):
            x, y = f"v{o + 2 * i}", f"v{o + 2 * i + 1}"
            add(Op(f"v_mul_f32 {x}, {r}, {x}", "valu", [x, r], [x]))
            add(Op(f"v_mul_f32 {y}, {r}, {y}", "valu", [y, r], [y]))
            add(Op(f"v_cvt_pk_bf16_f32 v{o + i}, {x}, {y}", "valu", [x, y], [f"v{o + i}"]))
        for i in range(4):
            x, y = f"v{o + i}", f"v{o + 4 + i}"
            add(Op(f"v_permlane16_swap_b32 {x}, {y}", "perm", [x, y], [x, y], cost=2))
        for h in range(2):
            so = (f"s{S_T + 4 * blk}" if blk else "0") if h == 0 else f"s{S_ST2 + blk}"
            add(Op(f"buffer_store_dwordx4 {rng('v', o + 4 * h, 4)}, v{V_OO}, s[{S_O}:{S_O + 3}], {so} offen offset:{64 * j}{fl(self.c.st)}",
                   "vst", R("v", o + 4 * h, 4) + [f"v{V_OO}"], [], cost=5))

    def hook(self, m):
        if m.mi in self.c.stamps:
            k = list(self.c.stamps).index(m.mi)
            self.s.add(Op(f"s_memrealtime s[{S_STAMP + 4 + 2 * k}:{S_STAMP + 5 + 2 * k}]", "salu", [], [], pin=m.mi))

    def body(self):
        c, s = self.c, self.s
        G = self.groups()
        self.ucount = {}
        cnt = {0: 0, 1: 0, 2: 0}
        for g in G:
            for u in g:
                self.ucount[u] = cnt[u[0]]
                cnt[u[0]] += 1
        self.landed, self.qwait = {}, {}
        ld = {}

        def put_dma(which, t, gap_m0, gaps):
            m0, l = self.dma_ops(which, t)
            m0.pin = gap_m0
            s.add(m0)
            for o, gp in zip(l, gaps):
                o.pin = gp
                s.add(o)
            ld[(which, t)] = l
            return m0

        put_dma("K", 0, -1, (-1, -1))
        qa = self.q_ops(0)
        for o in qa:
            o.pin = -1
            s.add(o)
        put_dma("K", 1, -1, (-1, -1))
        put_dma("V", 0, -1, (-1, -1))
        self.pre = None
        queue = []
        for t in range(2, 12):
            queue += [("K", t), ("V", t - 1)]
        queue += [("V", 11)] + [("Q", 1, h) for h in range(4)] + [("Q", 2, h) for h in range(4)]
        qops = {1: self.q_ops(1), 2: self.q_ops(2)}

        def sync(gap, items):
            w = Op("", "wait", pin=gap)
            w.vm_targets = [o for it in items for o in ld[it]]
            s.add(w)
            for o in w.vm_targets:
                s.order(o, w)
            b = s.add(Op("s_barrier", "barrier", pin=gap))
            s.order(w, b)
            for it in items:
                self.landed[it] = b
            return b

        def issue(n, gap, bar):
            for _ in range(n):
                if not queue:
                    return
                it = queue.pop(0)
                if it[0] == "Q":
                    for k, o in enumerate(qops[it[1]][2 * it[2]:2 * it[2] + 2]):
                        o.pin = gap + 1 + k
                        s.add(o)
                    gap += 2
                else:
                    m0 = put_dma(it[0], it[1], gap + (gap % 2 == 0), (gap + 1 + (gap % 2 == 0), gap + 2 + (gap % 2 == 0)))
                    s.order(bar, m0)
                    gap += 3 + (gap % 2 == 0)

        b = sync(-1, [("K", 0)])
        for _ in range(2 * (c.PF - 2)):
            it = queue.pop(0)
            m0 = put_dma(it[0], it[1], -1, (-1, -1))
            s.order(b, m0)
        self.late_pre = []
        for k in (3, 7):
            w = Op("", "wait", pin=-2 if k == 3 else 1)
            w.vm_targets = qa[:k + 1]
            s.add(w)
            for o in w.vm_targets:
                s.order(o, w)
            self.qwait[(0, k - 3)] = w

        def qwait(blk, gap):
            for k in (3, 7):
                w = Op("", "wait", pin=gap + (0 if k == 3 else 4))
                w.vm_targets = qops[blk][:k + 1]
                s.add(w)
                for o in w.vm_targets:
                    s.order(o, w)
                self.qwait[(blk, k - 3)] = w

        starts = {}
        pos = 8
        for i in range(len(G)):
            starts[i + 1] = pos
            if i + 1 < len(G):
                pos += 8 * len(G[i + 1])
            pos += 8 * len(G[i])

        def sync_for_step(t):
            gap = starts[t + 1] - c.D - 1
            gap -= (gap % 2 == 0)
            items = ([("K", t + 1)] if t + 1 < 12 else []) + [("V", t)]
            bar = sync(gap, items)
            issue(2 if t else 4, gap + 1, bar)

        sync_for_step(0)
        self.qk(G[0])
        merged = False
        for i in range(len(G)):
            last = i == len(G) - 1
            if i + 1 <= 11:
                sync_for_step(i + 1)
            elif queue:
                issue(2, starts[i + 1] + 1, b)
            if not last:
                for blk, t in G[i + 1]:
                    if blk and self.ucount[(blk, t)] == 0:
                        gap = starts[i + 1] - 1
                        qwait(blk, gap - (gap % 2 == 0))
                self.qk(G[i + 1])
            self.softmax(G[i])
            if c.tailmerge and i == len(G) - 2:
                continue
            done = [blk for blk, t in G[i] if self.ucount[(blk, t)] == 11]
            for blk in done:
                self.epi_head(blk)
            if c.tailmerge and last:
                for j in range(4):
                    for g in (G[i - 1], G[i]):
                        for ks in range(2):
                            self.pv_one(g, ks, j)
                    self.epi_tile(2, j)
            else:
                self.pv(G[i])
                for blk in done:
                    for j in range(4):
                        self.epi_tile(blk, j)
        return s.run()

    def kernel(self):
        c = self.c
        k = c.name + "_kernel"
        L = []
        A = L.append
        A(f"; @launch grid=(256,1,1) block=(256,1,1) lds=163840")
        A('.amdgcn_target "amdgcn-amd-amdhsa--gfx950"')
        A(".text")
        A(f".globl {k}")
        A(".p2align 8")
        A(f".type {k},@function")
        A(f"{k}:")
        if c.stamps:
            A(f"s_memrealtime s[{S_STAMP}:{S_STAMP + 1}]")
        A("s_cmp_ge_u32 s2, 256")
        A("s_cbranch_scc1 L_end")
        A("s_load_dwordx4 s[64:67], s[0:1], 0")
        A("s_load_dwordx4 s[68:71], s[0:1], 16")
        A("s_and_b32 s3, s2, 7")
        A("s_lshr_b32 s72, s2, 3")
        A("s_lshl_b32 s3, s3, 5")
        A("s_add_u32 s3, s3, s72")
        A("s_lshr_b32 s72, s3, 1")
        A(f"s_mul_i32 s73, s3, {HEAD_BYTES}")
        A(f"s_mul_i32 s72, s72, {HEAD_BYTES}")
        A("v_lshrrev_b32 v1, 6, v0")
        A("v_and_b32 v2, 63, v0")
        A("v_lshrrev_b32 v3, 4, v2")
        A(f"v_readfirstlane_b32 s{S_WL}, v1")
        A("v_and_b32 v4, 15, v2")
        A("v_and_b32 v5, 1, v1")
        A("v_lshl_add_u32 v5, v5, 3, v3")
        A("v_xor_b32 v5, v5, v4")
        A("v_lshl_add_u32 v6, v1, 3, v3")
        A("v_lshlrev_b32 v6, 8, v6")
        A(f"v_lshl_add_u32 v{V_KD0}, v5, 4, v6")
        A(f"v_xor_b32 v{V_KD1}, 64, v{V_KD0}")
        A("v_lshlrev_b32 v5, 2, v3")
        A("v_xor_b32 v5, v5, v4")
        A(f"v_lshl_add_u32 v{V_VD}, v5, 4, v6")
        A("v_and_b32 v7, 31, v2")
        A("v_lshrrev_b32 v8, 5, v2")
        A("v_lshl_add_u32 v5, v1, 5, v7")
        A("v_lshlrev_b32 v5, 8, v5")
        A(f"v_lshl_add_u32 v{V_QO}, v8, 4, v5")
        for t in range(12):
            A(f"s_mov_b32 s{S_T + t}, {t * KT}")
        A(f"s_lshl_b32 s{S_WL}, s{S_WL}, 11")
        for r in (S_Q, S_K, S_V, S_O):
            A(f"s_mov_b32 s{r + 2}, {HEAD_BYTES}")
            A(f"s_mov_b32 s{r + 3}, 0x00020000")
        A(f"s_mov_b32 s{S_MODE}, 0")
        for b in range(3):
            A(f"v_mov_b32 v{V_MPRE + b}, 0xff800000")
        A("v_lshl_add_u32 v5, v1, 5, v4")
        A("v_lshlrev_b32 v5, 8, v5")
        A(f"v_lshl_add_u32 v{V_OO}, v3, 4, v5")
        A("v_xor_b32 v5, v8, v4")
        A("v_lshlrev_b32 v5, 4, v5")
        A(f"v_lshl_add_u32 v{V_KA}, v7, 8, v5")
        for i in range(1, 8):
            A(f"v_xor_b32 v{V_KA + i}, {32 * i}, v{V_KA}")
        A("v_lshrrev_b32 v5, 2, v4")
        A("v_lshl_add_u32 v6, v8, 2, v5")
        A("v_lshlrev_b32 v6, 8, v6")
        A("v_lshl_add_u32 v6, v5, 6, v6")
        A("v_and_b32 v9, 1, v2")
        A("v_lshl_add_u32 v6, v9, 5, v6")
        A("v_and_b32 v9, 1, v3")
        A("v_lshl_add_u32 v6, v9, 4, v6")
        A("v_bfe_u32 v9, v2, 1, 1")
        A("v_lshl_add_u32 v6, v9, 3, v6")
        A(f"v_add_u32 v{V_VA}, {VBASE}, v6")
        for j in range(1, 4):
            A(f"v_xor_b32 v{V_VA + j}, {64 * j}, v{V_VA}")
        A(f"s_mov_b32 s{S_C}, {f32(C_SCALE):#x}")
        A(f"s_mov_b32 s{S_NC}, {f32(-C_SCALE):#x}")
        A(f"s_mov_b32 s{S_THR}, {f32(c.thr):#x}")
        for b in range(3):
            A(f"s_mov_b32 s{S_ST2 + b}, {b * 32768 + 4096}")
        A("s_waitcnt lgkmcnt(0)")
        for r, p, off in ((S_K, 66, 72), (S_Q, 64, 73), (S_V, 68, 72), (S_O, 70, 73)):
            A(f"s_add_u32 s{r}, s{p}, s{off}")
            A(f"s_addc_u32 s{r + 1}, s{p + 1}, 0")
        if c.stamps:
            A(f"s_memrealtime s[{S_STAMP + 2}:{S_STAMP + 3}]")
        A("L_start:")
        A(f"s_mov_b64 s[{S_FAIL}:{S_FAIL + 1}], 0")
        L += self.body()
        assert self.kwin == 0
        ns = len(c.stamps)
        if c.stamps:
            A(f"s_memrealtime s[{S_STAMP + 4 + 2 * ns}:{S_STAMP + 5 + 2 * ns}]")
        A("s_nop 1")
        A(f"s_cmp_lg_u64 s[{S_FAIL}:{S_FAIL + 1}], 0")
        A("s_cselect_b32 s74, 1, 0")
        A(f"s_lshr_b32 s75, s{S_WL}, 9")
        A("v_mov_b32 v128, s74")
        A("v_mov_b32 v129, s75")
        A("v_mov_b32 v130, 0")
        A("s_barrier")
        A("ds_write_b32 v129, v128")
        A("s_waitcnt lgkmcnt(0)")
        A("s_barrier")
        A("ds_read_b128 v[132:135], v130")
        A("s_waitcnt lgkmcnt(0)")
        A("v_or_b32 v132, v132, v133")
        A("v_or3_b32 v132, v132, v134, v135")
        A("s_nop 0")
        A("v_readfirstlane_b32 s74, v132")
        A("s_nop 0")
        A(f"s_andn2_b32 s74, s74, s{S_MODE}")
        A("s_cbranch_scc1 L_fallback")
        if c.stamps:
            A("s_waitcnt vmcnt(0)")
            A(f"s_memrealtime s[{S_STAMP + 6 + 2 * ns}:{S_STAMP + 7 + 2 * ns}]")
            A(f"s_load_dwordx2 s[76:77], s[0:1], {40 if c.stamp_dst == 'ws' else 32}")
            A("s_waitcnt lgkmcnt(0)")
            if c.pad >= 0:
                A("L_pad:")
                A("s_memrealtime s[80:81]")
                A("s_waitcnt lgkmcnt(0)")
                A(f"s_sub_u32 s80, s80, s{S_STAMP + 2 * c.pad}")
                A("s_cmp_lt_u32 s80, 6000")
                A("s_cbranch_scc1 L_pad")
            A("s_mov_b32 s78, " + ("0x10000000" if c.stamp_dst == "ws" else "256"))
            A("s_mov_b32 s79, 0x00020000")
            A(f"s_lshr_b32 s75, s{S_WL}, 5")
            A("s_lshl_b32 s74, s2, 8")
            A("s_add_u32 s74, s74, s75")
            A("v_mov_b32 v129, s74")
            for i in range(ns + 4):
                A(f"v_mov_b32 v128, s{S_STAMP + 2 * i}")
                A(f"buffer_store_dword v128, v129, s[76:79], 0 offen offset:{4 * i} sc1")
        A("L_end:")
        A("s_endpgm")
        A("L_fallback:")
        A("s_waitcnt vmcnt(0)")
        A(f"v_lshlrev_b32 v140, 16, v{V_QO}")
        A("v_lshrrev_b32 v140, 16, v140")
        A("v_and_b32 v140, 0x1fff, v140")
        for b in range(3):
            for f in range(8):
                A(f"buffer_load_dwordx4 v[{64 + 4 * f}:{67 + 4 * f}], v{V_QO}, s[{S_Q}:{S_Q + 3}], s{S_T + 4 * b} offen offset:{32 * f}")
            A("s_mov_b32 s74, 0")
            A(f"L_fb{b}:")
            for f in range(8):
                A(f"buffer_load_dwordx4 v[{96 + 4 * f}:{99 + 4 * f}], v140, s[{S_K}:{S_K + 3}], s74 offen offset:{32 * f}")
            A("s_waitcnt vmcnt(0)")
            for f in range(8):
                A(f"v_mfma_f32_32x32x16_bf16 v[0:15], v[{96 + 4 * f}:{99 + 4 * f}], v[{64 + 4 * f}:{67 + 4 * f}], {'0' if f == 0 else 'v[0:15]'}")
            A("s_nop 15")
            for i in range(8):
                A(f"v_max3_f32 v{V_MPRE + b}, v{V_MPRE + b}, v{2 * i}, v{2 * i + 1}")
            A(f"s_add_u32 s74, s74, {KT}")
            A(f"s_cmp_lt_u32 s74, {12 * KT}")
            A(f"s_cbranch_scc1 L_fb{b}")
        A(f"s_mov_b32 s{S_MODE}, 1")
        A("s_barrier")
        A("s_branch L_start")
        body = "\n".join(x if x.endswith(":") or x.startswith((";", ".")) else "    " + x for x in L)
        body += f"""
.section .rodata,"a"
.p2align 6
.amdhsa_kernel {k}
  .amdhsa_next_free_vgpr 512
  .amdhsa_next_free_sgpr 96
  .amdhsa_accum_offset 256
  .amdhsa_group_segment_fixed_size 0
  .amdhsa_kernarg_size 48
  .amdhsa_user_sgpr_count 2
  .amdhsa_user_sgpr_kernarg_segment_ptr 1
  .amdhsa_system_sgpr_workgroup_id_x 1
  .amdhsa_float_denorm_mode_32 3
.end_amdhsa_kernel
"""
        return body


def parse(args):
    kw = {}
    for a in args:
        k, v = a.split("=", 1)
        if k == "stamps":
            v = tuple(int(x) for x in v.split(",") if x)
        elif k in ("D", "PF", "nres", "tailmerge", "budget", "pad"):
            v = int(v)
        elif k == "thr":
            v = float(v)
        kw[k] = v
    return kw


if __name__ == "__main__":
    out = sys.argv[1]
    g = Gen(Cfg(**parse(sys.argv[2:])))
    txt = g.kernel()
    open(out, "w").write(txt)
    gc = g.s.gapcost
    print(out, "mfma", g.s.nm(), g.s.stats, "pre", gc[0], file=sys.stderr)
    for i in range(1, len(gc), 32):
        print(f"{i - 1:4d} " + "".join(str(min(9, x)) for x in gc[i:i + 32]), file=sys.stderr)
```

```python
def R(kind, lo, n=1):
    return [f"{kind}{i}" for i in range(lo, lo + n)]


def rng(kind, lo, n):
    return f"{kind}{lo}" if n == 1 else f"{kind}[{lo}:{lo + n - 1}]"


class Op:
    __slots__ = ("text", "kind", "reads", "writes", "cost", "pin", "idx", "preds", "succs", "deadline",
                 "pos", "mi", "srcc", "vm_targets", "lgkm_targets", "tag", "early", "gap", "due", "passes")

    def __init__(self, text, kind, reads=(), writes=(), cost=1, pin=None, srcc=(), tag=None, early=None, due=None, passes=8):
        self.text, self.kind = text, kind
        self.reads, self.writes = list(reads), list(writes)
        self.cost, self.pin, self.srcc, self.tag = cost, pin, list(srcc), tag
        self.early, self.due, self.passes = early, due, passes
        self.preds, self.succs = {}, []
        self.deadline = 1 << 30
        self.pos = self.mi = self.gap = None
        self.vm_targets, self.lgkm_targets = [], []


VALU = ("valu", "trans", "perm")
SCAL = ("salu", "wait", "barrier")
BIG = 1 << 30


def hard_dist(p, c, reg, rel):
    if rel == "raw":
        if p.kind == "mfma":
            if c.kind == "mfma":
                if reg in c.srcc:
                    return 0 if (p.writes == c.srcc) else p.passes + 2
                return p.passes + 4
            return p.passes + 4
        if p.kind in VALU:
            if c.kind == "mfma":
                return 2
            if c.kind == "perm":
                return 2
            if p.kind == "trans" and c.kind != "trans":
                return 1
            if reg.startswith("s") or reg == "vcc":
                if c.kind in VALU:
                    return 2
                if c.kind in ("vld", "vst"):
                    return 5
                return 1
            return 0
        if p.kind == "salu" and reg == "m0":
            return 1
        return 0
    if rel == "waw":
        if p.kind == "mfma" and c.kind != "mfma":
            return p.passes + 4
        if p.kind == "mfma" and c.kind == "mfma":
            return 0 if p.writes == c.writes else p.passes + 4
        return 0
    if rel == "war":
        if p.kind == "mfma" and reg in p.srcc and c.kind != "mfma":
            return p.passes - 1
        if p.kind == "vst":
            return 2
        return 0
    raise ValueError(rel)


def soft_dist(p, c, rel):
    if rel == "raw" and p.kind in VALU and c.kind in VALU:
        return 2 if p.kind == "trans" else 1
    return 0


class Sched:
    def __init__(self, budget=6, floor=None, lgkm_every=2):
        self.ops, self.mfmas = [], []
        self.lastw, self.readers = {}, {}
        self.budget = budget
        self.floor = budget if floor is None else floor
        self.lgkm_every = lgkm_every
        self.sinks = {}

    def add(self, op):
        op.idx = len(self.ops)
        for r in op.reads:
            p = self.lastw.get(r)
            if p is not None:
                self._dep(p, op, r, "raw")
        for r in op.writes:
            p = self.lastw.get(r)
            if p is not None:
                self._dep(p, op, r, "waw")
            for q in self.readers.get(r, ()):
                if q is not op:
                    self._dep(q, op, r, "war")
        for r in op.reads:
            self.readers.setdefault(r, []).append(op)
        for r in op.writes:
            self.lastw[r] = op
            self.readers[r] = []
        if op.kind == "mfma":
            op.mi = len(self.mfmas)
            self.mfmas.append(op)
        self.ops.append(op)
        return op

    def order(self, p, c):
        self._dep(p, c, "", "ord")

    def _dep(self, p, c, reg, rel):
        h = 0 if rel == "ord" else hard_dist(p, c, reg, rel)
        s = 0 if rel == "ord" else soft_dist(p, c, rel)
        if p in c.preds:
            oh, os_ = c.preds[p]
            c.preds[p] = (max(h, oh), max(s, os_))
        else:
            c.preds[p] = (h, s)
            p.succs.append(c)

    def nm(self):
        return len(self.mfmas)

    def deadlines(self):
        for op in reversed(self.ops):
            if op.kind == "mfma":
                op.deadline = op.mi
                continue
            d = BIG if op.due is None else op.due
            for s in op.succs:
                if s.kind == "mfma":
                    d = min(d, s.mi)
                elif s.pin is None:
                    d = min(d, s.deadline)
                else:
                    d = min(d, s.deadline, s.pin if op.kind in VALU else s.pin + 1)
            if op.pin is not None:
                d = min(d, op.pin + 1)
            op.deadline = d

    def run(self, passes=6, spread=12):
        self.deadlines()
        extra = {g: [(1000, dl)] for g, dl in self.sinks.items()}
        best = None
        for it in range(passes):
            out = self.one(extra)
            cost = sum(max(self.floor, c) for g, c in enumerate(self.gapcost[1:-1]) if g not in self.sinks) + self.gapcost[-1]
            if best is None or cost < best[0]:
                best = (cost, out, list(self.gapcost), dict(self.stats), list(self.events), it)
            for g, c in self.forced.items():
                if c <= 0 or g in self.sinks:
                    continue
                k = g - 1
                left = c
                for rnd in range(4):
                    for k in range(g, max(-1, g - spread), -1):
                        if left <= 0:
                            break
                        extra.setdefault(k, []).append((1, g + 1))
                        left -= 1
        cost, out, self.gapcost, self.stats, self.events, it = best
        self.stats["pass"] = it
        self.stats["cost"] = cost
        return out

    def one(self, extra):
        ops, lgkm_every = self.ops, self.lgkm_every
        for op in ops:
            op.pos = op.gap = None
        out = []
        self.state = self.nds = self.nvm = 0
        self.ds_done = self.vm_done = -1
        self.stats = {"nops": 0}
        self.gapcost, self.events, self.forced = [], [], {}
        npend = {op: len(op.preds) for op in ops}
        ready = [op for op in ops if op.kind != "mfma" and op.pin is None and npend[op] == 0]
        pinned = {}
        for op in ops:
            if op.pin is not None:
                pinned.setdefault(op.pin, []).append(op)
        seq = {}
        extra_lg = {}
        self.g = -1

        def need(op, soft):
            n = 0
            for p, (h, s) in op.preds.items():
                n = max(n, p.pos + 1 + (max(h, s) if soft else h) - self.state)
            return n

        def emit_text(t, states=1):
            out.append(t)
            self.state += states

        def prio(o):
            return (o.deadline, o.idx)

        def filler(exclude):
            c = [o for o in ready if o is not exclude and o.kind in VALU and need(o, False) <= 0
                 and (o.early is None or o.early <= self.g)]
            if not c:
                return None
            c2 = [o for o in c if need(o, True) <= 0] or c
            return min(c2, key=prio)

        def emit(op, fill=True):
            for p in op.preds:
                assert p.pos is not None, f"pred not emitted: {p.text} -> {op.text}"
            while need(op, False) > 0:
                f = filler(op) if fill else None
                if f is not None:
                    ready.remove(f)
                    emit(f, False)
                    self.cur += f.cost
                else:
                    k = min(need(op, False), 16)
                    emit_text(f"s_nop {k - 1}", k)
                    self.stats["nops"] += k
                    self.cur += k
            text = op.text
            if op.kind == "wait":
                parts = []
                if op.vm_targets:
                    k = max(seq[t] for t in op.vm_targets)
                    assert self.nvm - 1 - k <= 63
                    parts.append(f"vmcnt({self.nvm - 1 - k})")
                    self.vm_done = max(self.vm_done, k)
                lg = op.lgkm_targets + extra_lg.get(op, [])
                if lg:
                    k = max(seq[t] for t in lg)
                    if k > self.ds_done:
                        n = min(15, self.nds - 1 - k)
                        parts.append(f"lgkmcnt({n})")
                        self.ds_done = self.nds - 1 - n
                text = "s_waitcnt " + " ".join(parts) if parts else "s_nop 0"
            op.pos = self.state
            op.gap = self.g
            emit_text(text)
            if op.kind == "ds":
                seq[op] = self.nds
                self.nds += 1
            elif op.kind in ("vld", "vst"):
                seq[op] = self.nvm
                self.nvm += 1
            if op.tag or op.kind == "barrier":
                self.events.append((op.kind, op.tag, seq.get(op), self.vm_done, self.ds_done, self.g))
            for s in op.succs:
                npend[s] -= 1
                if npend[s] == 0 and s.kind != "mfma" and s.pin is None:
                    ready.append(s)

        def ds_needed(m):
            return [p for p in m.preds if p.kind == "ds"]

        def lgkm_wait(targets):
            k = max(seq[t] for t in targets)
            if k <= self.ds_done:
                return False
            n = min(15, self.nds - 1 - k)
            emit_text(f"s_waitcnt lgkmcnt({n})")
            self.ds_done = self.nds - 1 - n
            return True

        def closure(op, acc):
            for p in op.preds:
                if p.pos is None and p not in acc:
                    assert p.kind != "mfma", f"cycle: {p.text} before {op.text} (gap {self.g})"
                    acc.add(p)
                    closure(p, acc)
            return acc

        def force_preds(op):
            must = closure(op, set())
            while must:
                c = [o for o in must if all(p.pos is not None for p in o.preds)]
                o = min(c, key=lambda o: (need(o, False) > 0, need(o, True) > 0, o.idx))
                must.remove(o)
                if o.pos is not None:
                    continue
                if o in ready:
                    ready.remove(o)
                emit(o)
                self.cur += o.cost
                must = {x for x in must if x.pos is None}

        def force(op):
            if op.pos is not None:
                return
            force_preds(op)
            if op in ready:
                ready.remove(op)
            emit(op)
            self.cur += op.cost

        nm = len(self.mfmas)
        for g in range(-1, nm):
            if g >= 0:
                m = self.mfmas[g]
                self.cur = 0
                force_preds(m)
                t = ds_needed(m)
                if t and lgkm_wait(t):
                    self.cur += 1
                emit(m)
                self.gapcost[-1] += self.cur
                if self.cur:
                    self.forced[g - 1] = self.forced.get(g - 1, 0) + min(self.cur, self.gapcost[-1] - self.budget)
            self.g = g
            self.cur = 0
            pins = pinned.get(g, [])
            if g < 0:
                for o in pins:
                    force(o)
                self.gapcost.append(self.cur)
                continue
            sink = g in self.sinks
            scal = [o for o in pins if o.kind in SCAL]
            nsalu = 0
            if g % lgkm_every == 0:
                t = []
                for k in range(g + 1, min(nm, g + 1 + lgkm_every)):
                    t += [p for p in ds_needed(self.mfmas[k]) if p.pos is not None]
                if t:
                    w = [o for o in scal if o.kind == "wait" and o.pos is None]
                    if w and not sink:
                        extra_lg[w[0]] = t
                    elif lgkm_wait(t):
                        nsalu += 1

            def do_scal():
                n = 0
                for o in scal:
                    if o.pos is None:
                        force(o)
                        self.cur -= 1
                        n += 1
                return n
            late = sink and any(o.kind == "wait" for o in scal)
            if not late:
                nsalu += do_scal()
                self.cur += max(0, nsalu - 1)
            free = [o for o in pins if o.kind not in SCAL and (not late or not (closure(o, set()) & set(scal)))]
            pre = self.cur
            for o in free:
                force(o)
            last = g == nm - 1
            ex = list(extra.get(g, []))
            while not last:
                room = self.budget - self.cur
                cand = [o for o in ready if (o.early is None or o.early <= g)]
                fit = [o for o in cand if o.cost <= room]
                pick = None
                for soft in (True, False):
                    c = [o for o in fit if need(o, soft) <= 0]
                    if c:
                        pick = min(c, key=prio)
                        break
                if pick is None and ex:
                    xa = sum(a for a, _ in ex)
                    dl = max(d for _, d in ex)
                    c = [o for o in cand if o.deadline <= dl and o.cost <= max(0, room) + xa and need(o, True) <= 0]
                    if not c and xa >= 1000:
                        c = [o for o in cand if o.deadline <= dl and need(o, False) <= 0]
                    if c:
                        pick = min(c, key=prio)
                        use = pick.cost - max(0, room)
                        ex = [(xa - use, dl)] if xa - use > 0 else []
                if pick is None:
                    urgent = [o for o in ready if o.deadline <= g + 1]
                    if urgent:
                        pick = min(urgent, key=lambda o: (need(o, False) > 0, need(o, True) > 0, o.idx))
                        self.forced[g] = self.forced.get(g, 0) + min(pick.cost, max(0, pick.cost - room))
                if pick is None:
                    break
                ready.remove(pick)
                emit(pick)
                self.cur += pick.cost
            if late:
                do_scal()
                for o in pins:
                    force(o)
            if last:
                while ready:
                    c = [o for o in ready if need(o, True) <= 0] or [o for o in ready if need(o, False) <= 0] or ready
                    o = min(c, key=lambda o: (o.kind in VALU, need(o, False), o.idx))
                    ready.remove(o)
                    emit(o)
                    self.cur += o.cost
            self.gapcost.append(self.cur)
        for op in ops:
            assert op.pos is not None, f"not emitted: {op.text}"
        self.stats["over"] = sum(max(0, c - self.floor) for c in self.gapcost[1:-1])
        self.stats["under"] = sum(max(0, self.floor - c) for c in self.gapcost[1:-1])
        self.stats["tail"] = self.gapcost[-1]
        return out
```

```python
import struct
import sys
from sched2 import Op, Sched, R, rng

NAME = "standalone__gqa_softmax__near_ridge"
HEAD_BYTES = 384 * 256
KT = 8192
VBASE = 12 * KT


def f32(x):
    return struct.unpack("<I", struct.pack("<f", x))[0]


C_SCALE = 1.4426950408889634 * (128 ** -0.5)

S_Q, S_K, S_V, S_O = 4, 8, 12, 16
S_C, S_NC, S_WL, S_MODE, S_FAIL, S_THR = 20, 21, 22, 23, 24, 26
S_QM, S_QCM, S_DELTA, S_64K = 27, 28, 29, 30
S_T = 32
S_ST2 = 44
S_STAMP = 48
S_KA = 80
S_QS = 90
V_O = {"X": 0, "Y": 64}
V_S = {"X": 128, "Y": 160}
V_P = {"X": 192, "Y": 200}
V_KA, V_KH, V_QR, V_VA = 208, 212, 216, 220
V_KD, V_VD, V_OO, V_QO = 228, 232, 234, 234
V_MC = {"X": 236, "Y": 238}
V_MPRE = {0: 236, 1: 238, 2: 235}
V_L = {"X": 240, "Y": 244}
V_ONE = 248
MF = "v_mfma_f32_16x16x32_bf16"
A_VREG = 0
A_Q = {0: 128, 1: 160, 2: 192}
A_RING, NRING = 224, 8
STREAM = {0: "X", 1: "Y", 2: "X"}
NRES = 4
Q_REG = {0: [16, 17, 18, 19], 1: [8, 9, 10, 11], 2: [13, 14, 10, 11]}


class Cfg:
    a = 2
    b = 2
    split = 1
    D = 12
    Dj = 12
    W = 12
    W0 = 12
    tq = 7
    qreg = ""
    defer = (2, 2, 2, 2)
    cdma = 1
    cst = 5
    cbar = 2
    stsp = 16
    dmasp = 4
    sink = 1
    lsum = 1
    passes = 6
    spread = 24
    ld = ""
    qf = ""
    st = "sc1"
    stamps = ()
    gst = ()
    stamp_dst = "ws"
    thr = 2.0 ** 24
    budget = 3
    floor = 2
    lge = 4
    name = NAME
    pad = -1
    cyc = 0
    dsame = 0

    def __init__(self, **kw):
        for k, v in kw.items():
            assert hasattr(self, k), k
            setattr(self, k, v)


def fl(x):
    return (" " + x.replace("+", " ")) if x else ""


class Gen:
    def __init__(self, cfg):
        self.c = cfg
        self.s = Sched(cfg.budget, cfg.floor, cfg.lge)
        self.ring = 0

    def plan(self):
        c = self.c
        a, b = c.a, c.b
        G = [[(0, t)] for t in range(a)]
        G += [[(0, t), (1, t)] for t in range(a, 12)]
        G += [[(1, t)] for t in range(b)]
        G += [[(1, t), (2, t)] for t in range(b, a)]
        G += [[(2, t)] for t in list(range(b)) + list(range(a, 12))]
        self.G = G
        self.ucount, cnt = {}, {0: 0, 1: 0, 2: 0}
        for g in G:
            for u in g:
                self.ucount[u] = cnt[u[0]]
                cnt[u[0]] += 1
        n = len(G)
        self.split = c.split and 1 <= a <= NRES
        seg = [("qk", G[0])]
        late = {j: [] for j in range(4)}
        for i in range(n):
            sp = self.split and i + 1 == a
            if i + 1 < n:
                seg.append(("qk", G[i + 1][:1] if sp else G[i + 1]))
            if not (self.split and i == a):
                seg.append(("sm", G[i]))
            else:
                seg.append(("sm", G[i][1:]))
            done = [blk for blk, t in G[i] if self.ucount[(blk, t)] == 11]
            now = [j for j in range(4) if n - i > c.defer[j]]
            for j in range(4):
                if j not in now:
                    assert len(G[i]) == 1 and G[i][0][0] == 2
                    late[j].append(G[i])
            after = G[i][-1][0] == 2 and self.ucount[G[i][-1]] == 0
            if c.lsum and not after:
                seg.append(("ls", G[i]))
            for blk in done:
                seg.append(("eh", blk))
            seg.append(("pv", [(G[i], ks, j) for j in now for ks in range(2)]))
            if c.lsum and after:
                seg.append(("ls", G[i]))
            for blk in done:
                if blk != 2:
                    for j in range(4):
                        seg.append(("et", blk, j))
            if sp:
                seg.append(("sm", G[i + 1][:1]))
                seg.append(("qk2", G[i + 1][1:]))
        for j in range(4):
            seg.append(("pv", [(g, ks, j) for g in late[j] for ks in range(2)]))
            seg.append(("et", 2, j))
        self.seg = seg
        pos = 0
        self.qk_start, self.pv_start, self.o_first, self.o_last, self.o_unit = {}, {}, {}, {}, {}
        for sg in seg:
            if sg[0] in ("qk", "qk2"):
                for u in sg[1]:
                    self.qk_start[u] = pos
                pos += 16 * len(sg[1])
            elif sg[0] == "ls":
                pos += 2 * len(sg[1])
            elif sg[0] == "pv":
                for g, ks, j in sg[1]:
                    for u in g:
                        self.pv_start.setdefault(u, pos)
                        self.o_first.setdefault((u[0], j), pos)
                        self.o_unit.setdefault((u[0], j), u)
                        self.o_last[(u[0], j)] = pos + 1
                        pos += 2
        self.nm = pos
        if c.gst:
            st = [self.qk_start[G[i][-1]] for i in c.gst]
            assert len(set(st)) == len(st)
            c.stamps = tuple(st)
        self.pb = {}
        pool = [V_P["X"], V_P["Y"]] + [V_S["Y"] + 8 * k for k in range(4)] + [V_O["Y"] + 8 * k for k in range(8)]
        nd = max(c.defer)
        prev = None
        for i, g in enumerate(G):
            if len(g) == 2:
                for u in g:
                    self.pb[u] = V_P[STREAM[u[0]]]
                prev = None
            elif n - i <= nd:
                k = i - (n - nd)
                first = 1 if prev == V_P["X"] else 0
                if k == 0:
                    self.pool_order = [pool[first], pool[1 - first]] + pool[2:]
                    if nd > 2:
                        self.pool_order = pool[2:nd] + self.pool_order[:2]
                self.pb[g[0]] = self.pool_order[k]
            else:
                u = g[0]
                own, other = V_P[STREAM[u[0]]], V_P["Y" if STREAM[u[0]] == "X" else "X"]
                if i < a:
                    p = other if (a - i) % 2 == 1 else own
                else:
                    p = other if prev == own else own
                self.pb[u] = prev = p
        self.st_pin = {}
        last = -100
        for blk in range(3):
            keys = [(j, h) for j in range(4) for h in range(2)]
            lo = {k: self.o_last[(blk, k[0])] + 12 + 4 * k[1] for k in keys}
            if blk == 0:
                hi = {k: self.o_first[(2, k[0])] - 1 for k in keys}
                t0, t1 = lo[keys[0]], hi[keys[-1]]
                sp = min(c.stsp, (t1 - t0) / 7)
                p = {k: min(hi[k], max(lo[k], round(t0 + sp * x))) for x, k in enumerate(keys)}
            elif blk == 1:
                p = {}
                for k in keys:
                    last = p[k] = max(lo[k], last + c.stsp)
            else:
                p = {k: (lo[k] if lo[k] < self.nm - 1 else None) for k in keys}
            for k in keys:
                self.st_pin[(blk,) + k] = p[k]
            last = max(x for x in p.values() if x is not None)

    def vreg(self, t):
        return 12 + t % 8

    def item_ops(self, it):
        c = self.c
        if it[0] == "Q":
            blk = it[1]
            if "ABC"[blk] in c.qreg:
                so = "0" if blk == 0 else f"s{S_T + 4 * blk}"
                return [(None, [Op(f"buffer_load_dwordx4 {rng('a', A_Q[blk] + 4 * s, 4)}, v{V_QO}, s[{S_Q}:{S_Q + 3}], {so} offen offset:{32 * s}{fl(c.qf)}",
                                   "vld", [f"v{V_QO}"], R("a", A_Q[blk] + 4 * s, 4), cost=c.cdma) for s in range(8)])]
            res = []
            for half in range(2):
                base, imm = (S_QCM, 0) if blk == 2 else (S_QM, Q_REG[blk][0] * KT)
                m0 = Op(f"s_add_u32 m0, s{base}, {imm + 4096 * half}", "salu", [f"s{base}"], ["m0", "scc"])
                ld = [Op(f"buffer_load_dwordx4 v{V_KD + i}, s[{S_Q}:{S_Q + 3}], s{S_QS + 2 * blk + half} offen offset:{1024 * i}{fl(c.qf)} lds",
                         "vld", [f"v{V_KD + i}", "m0"], [], cost=c.cdma, tag=("dma", tuple(Q_REG[blk]), it)) for i in range(4)]
                res.append((m0, ld))
            return res
        which, t = it
        if which == "K":
            reg, srd, vo = t, S_K, (V_KD, V_KD + 1)
        else:
            reg, srd, vo = self.vreg(t), S_V, (V_VD, V_VD + 1)
        m0 = Op(f"s_add_u32 m0, s{S_WL}, {reg * KT}", "salu", [f"s{S_WL}"], ["m0", "scc"])
        ld = [Op(f"buffer_load_dwordx4 v{vo[j]}, s[{srd}:{srd + 3}], s{S_T + (0 if c.dsame else t)} offen offset:{1024 * j}{fl(c.ld)} lds",
                 "vld", [f"v{vo[j]}", "m0"], [], cost=c.cdma, tag=("dma", (reg,), it)) for j in range(2)]
        return [(m0, ld)]

    def ring_slot(self):
        r = A_RING + 4 * self.ring
        self.ring = (self.ring + 1) % NRING
        return r

    def frag_pin(self, joint):
        return max(-1, self.s.nm() - (self.c.Dj if joint else self.c.D))

    def k_frag(self, t, s, joint):
        r = self.ring_slot()
        base = V_KH if t >= 8 else V_KA
        o = self.s.add(Op(f"ds_read_b128 {rng('a', r, 4)}, v{base + s % 4} offset:{(t % 8) * KT + 4096 * (s // 4)}", "ds",
                          [f"v{base + s % 4}"], R("a", r, 4), pin=max(self.frag_pin(joint), self.land_gap[("K", t)]),
                          tag=("rd", (t,), ("K", t), True)))
        self.s.order(self.landed[("K", t)], o)
        return r

    def v_frag(self, t, ks, j, first_pass, joint):
        res = t < NRES
        dt = 2 * j + ks
        r = A_VREG + 32 * t + 4 * dt if res else None
        if res and not first_pass:
            return r
        if not res:
            r = self.ring_slot()
        for jj in range(2):
            off = self.vreg(t) * KT - VBASE + jj * 4096
            o = self.s.add(Op(f"ds_read_b64_tr_b16 {rng('a', r + 2 * jj, 2)}, v{V_VA + dt} offset:{off}", "ds",
                              [f"v{V_VA + dt}"], R("a", r + 2 * jj, 2), pin=max(self.frag_pin(joint), self.land_gap[("V", t)]),
                              tag=("rd", (self.vreg(t),), ("V", t), True)))
            self.s.order(self.landed[("V", t)], o)
        return r

    def q_reads(self, blk, wait, gaps):
        res = []
        for s in range(8):
            o = self.s.add(Op(f"ds_read_b128 {rng('a', A_Q[blk] + 4 * s, 4)}, v{V_QR + s % 4} offset:{4096 * (s // 4)}", "ds", [f"v{V_QR + s % 4}"],
                              R("a", A_Q[blk] + 4 * s, 4), pin=gaps[s], tag=("rd", tuple(Q_REG[blk]), ("Q", blk), False)))
            self.s.order(wait, o)
            res.append(o)
        nxt = {0: f"v_subrev_u32 v{{0}}, s{S_64K}, v{{0}}", 1: f"v_add_u32 v{{0}}, s{S_DELTA}, v{{0}}"}.get(blk)
        if nxt and any("ABC"[k] not in self.c.qreg for k in range(blk + 1, 3)):
            for s in range(4):
                self.s.add(Op(nxt.format(V_QR + s), "valu", [f"v{V_QR + s}"], [f"v{V_QR + s}"]))
        return res

    def sbuf(self, blk, t):
        return V_S[STREAM[blk]] + 16 * (self.ucount[(blk, t)] % 2)

    def qk(self, grp, reuse=False):
        t = grp[0][1]
        if not reuse:
            self.kfr = []
        for s in range(8):
            if not reuse:
                self.kfr.append(self.k_frag(t, s, len(grp) > 1))
            a = self.kfr[s]
            kh, s4 = s // 4, s % 4
            for blk, _ in grp:
                for qh in range(2):
                    d = self.sbuf(blk, t) + 8 * qh + 4 * kh
                    q = A_Q[blk] + 16 * qh + 4 * s4
                    cs = "0" if s4 == 0 else rng("v", d, 4)
                    srcc = [] if s4 == 0 else R("v", d, 4)
                    m = self.s.add(Op(f"{MF} {rng('v', d, 4)}, {rng('a', a, 4)}, {rng('a', q, 4)}, {cs}",
                                      "mfma", R("a", a, 4) + R("a", q, 4) + srcc, R("v", d, 4), srcc=srcc, passes=4))
                    self.hook(m)

    def pv_one(self, units, ks, j):
        t = units[0][1]
        a = self.v_frag(t, ks, j, units[0][0] == 0, len(units) > 1)
        for blk, _ in units:
            for qh in range(2):
                d = V_O[STREAM[blk]] + 16 * j + 8 * qh + 4 * ks
                p = self.pb[(blk, t)] + 4 * qh
                first = self.o_unit[(blk, j)] == (blk, t)
                cs = "0" if first else rng("v", d, 4)
                srcc = [] if first else R("v", d, 4)
                m = self.s.add(Op(f"{MF} {rng('v', d, 4)}, {rng('a', a, 4)}, {rng('v', p, 4)}, {cs}",
                                  "mfma", R("a", a, 4) + R("v", p, 4) + srcc, R("v", d, 4), srcc=srcc, passes=4))
                self.hook(m)

    def lsum(self, grp):
        for blk, t in grp:
            d = V_L[STREAM[blk]]
            for qh in range(2):
                p, a = self.pb[(blk, t)] + 4 * qh, V_ONE + 4 * qh
                first = self.ucount[(blk, t)] == 0 and qh == 0
                cs = "0" if first else rng("v", d, 4)
                srcc = [] if first else R("v", d, 4)
                m = self.s.add(Op(f"{MF} {rng('v', d, 4)}, {rng('v', a, 4)}, {rng('v', p, 4)}, {cs}",
                                  "mfma", R("v", p, 4) + srcc, R("v", d, 4), srcc=srcc, passes=4))
                self.hook(m)

    def reduce4(self, x, y, op):
        add = self.s.add
        add(Op(f"v_permlane32_swap_b32 {x}, {y}", "perm", [x, y], [x, y], cost=2))
        add(Op(f"{op} {x}, {x}, {y}", "valu", [x, y], [x]))
        add(Op(f"v_mov_b32 {y}, {x}", "valu", [x], [y]))
        add(Op(f"v_permlane16_swap_b32 {x}, {y}", "perm", [x, y], [x, y], cost=2))
        add(Op(f"{op} {x}, {x}, {y}", "valu", [x, y], [x]))

    def spread2(self, x, y):
        add = self.s.add
        add(Op(f"v_mov_b32 {y}, {x}", "valu", [x], [y]))
        add(Op(f"v_permlane32_swap_b32 {x}, {y}", "perm", [x, y], [x, y], cost=2))

    def softmax(self, grp):
        add = self.s.add
        for blk, t in grp:
            st = STREAM[blk]
            sb, mc = self.sbuf(blk, t), V_MC[st]
            if self.ucount[(blk, t)] == 0:
                for k in range(4):
                    for qh in range(2):
                        sv = [f"v{sb + 8 * qh + i}" for i in range(8)]
                        tt = f"v{self.pb[(blk, t)] + qh}"
                        if k == 3:
                            add(Op(f"v_max_f32 {tt}, {tt}, {sv[7]}", "valu", [tt, sv[7]], [tt]))
                            continue
                        src = sv[0:3] if k == 0 else [tt, sv[1 + 2 * k], sv[2 + 2 * k]]
                        add(Op(f"v_max3_f32 {tt}, {src[0]}, {src[1]}, {src[2]}", "valu", src, [tt]))
                t0, t1 = f"v{self.pb[(blk, t)]}", f"v{self.pb[(blk, t)] + 1}"
                self.reduce4(t0, t1, "v_max_f32")
                add(Op(f"v_max_f32 {t0}, {t0}, v{V_MPRE[blk]}", "valu", [t0, f"v{V_MPRE[blk]}"], [t0]))
                add(Op(f"v_mul_f32 v{mc}, s{S_NC}, {t0}", "valu", [t0], [f"v{mc}"]))
                self.spread2(f"v{mc}", f"v{mc + 1}")
        for kh in range(2):
            for i in range(2):
                for blk, t in grp:
                    for qh in range(2):
                        st = STREAM[blk]
                        sb, l, mc = self.sbuf(blk, t), f"v{V_L[st] + qh}", f"v{V_MC[st] + qh}"
                        first = self.ucount[(blk, t)] == 0 and kh == 0 and i == 0
                        e = [f"v{sb + 8 * qh + 4 * kh + 2 * i + k}" for k in range(2)]
                        for x in e:
                            add(Op(f"v_fma_f32 {x}, {x}, s{S_C}, {mc}", "valu", [x, mc], [x]))
                        for x in e:
                            add(Op(f"v_exp_f32 {x}, {x}", "trans", [x], [x], cost=2))
                        pr = f"v{self.pb[(blk, t)] + 4 * qh + 2 * kh + i}"
                        add(Op(f"v_cvt_pk_bf16_f32 {pr}, {e[0]}, {e[1]}", "valu", e, [pr]))
                        if self.c.lsum:
                            continue
                        if first:
                            add(Op(f"v_add_f32 {l}, {e[0]}, {e[1]}", "valu", e, [l]))
                        else:
                            for x in e:
                                add(Op(f"v_add_f32 {l}, {l}, {x}", "valu", [x, l], [l]))

    def epi_head(self, blk):
        add = self.s.add
        st = STREAM[blk]
        a, b, r = f"v{V_L[st]}", f"v{V_L[st] + 1}", V_L[st] + 2
        if not self.c.lsum:
            self.reduce4(a, b, "v_add_f32")
        add(Op(f"v_rcp_f32 v{r}, {a}", "trans", [a], [f"v{r}"], cost=2))
        self.spread2(f"v{r}", f"v{r + 1}")
        due = self.o_last[(blk, 3)] + 8
        add(Op(f"v_cmp_nge_f32 vcc, s{S_THR}, {a}", "valu", [a], ["vcc"], due=due))
        add(Op(f"s_or_b64 s[{S_FAIL}:{S_FAIL + 1}], s[{S_FAIL}:{S_FAIL + 1}], vcc", "salu2", ["vcc", f"s{S_FAIL}"], [f"s{S_FAIL}", "scc"], due=due + 1))

    def epi_tile(self, blk, j):
        add = self.s.add
        st = STREAM[blk]
        o = V_O[st] + 16 * j
        for h in range(2):
            r = f"v{V_L[st] + 2 + h}"
            for i in range(4 * h, 4 * h + 4):
                x, y = f"v{o + 2 * i}", f"v{o + 2 * i + 1}"
                add(Op(f"v_mul_f32 {x}, {r}, {x}", "valu", [x, r], [x]))
                add(Op(f"v_mul_f32 {y}, {r}, {y}", "valu", [y, r], [y]))
                add(Op(f"v_cvt_pk_bf16_f32 v{o + 8 * h + i % 4}, {x}, {y}", "valu", [x, y], [f"v{o + 8 * h + i % 4}"]))
            for i in range(2):
                x, y = f"v{o + 8 * h + i}", f"v{o + 8 * h + 2 + i}"
                add(Op(f"v_permlane16_swap_b32 {x}, {y}", "perm", [x, y], [x, y], cost=2))
            so = (f"s{S_T + 4 * blk}" if blk else "0") if h == 0 else f"s{S_ST2 + blk}"
            add(Op(f"buffer_store_dwordx4 {rng('v', o + 8 * h, 4)}, v{V_OO}, s[{S_O}:{S_O + 3}], {so} offen offset:{64 * j}{fl(self.c.st)}",
                   "vst", R("v", o + 8 * h, 4) + [f"v{V_OO}"], [], cost=self.c.cst, pin=self.st_pin[(blk, j, h)]))

    def hook(self, m):
        if m.mi in self.c.stamps:
            k = list(self.c.stamps).index(m.mi)
            self.s.add(Op(f"s_memrealtime s[{S_STAMP + 4 + 2 * k}:{S_STAMP + 5 + 2 * k}]", "salu", [], [], pin=m.mi))

    def load_plan(self):
        c, a, G = self.c, self.c.a, self.G
        joint = lambda t: t >= a
        dk = lambda t: c.Dj if joint(t) and not (self.split and t == a) else c.D
        pts = []
        for t in range(12):
            its = ([("K", t + 1)] if t < 11 else []) + [("V", t)]
            if t < 11:
                gap = self.qk_start[(0, t + 1)] - dk(t + 1) - 1
            else:
                gap = self.pv_start[(0, t)] - (c.Dj if joint(t) else c.D) - 1
            if not self.split and t == a - 1 and t < 11:
                pts.append(dict(gap=gap, items=its[:1], bar=True, name=t - 0.5))
                gap = self.pv_start[(0, t)] - c.D - 1
                its = its[1:]
            pts.append(dict(gap=gap, items=its, bar=True, name=t))
        fb = min((u for u in self.qk_start if u[0] == 1), key=lambda u: self.qk_start[u])
        fc = min((u for u in self.qk_start if u[0] == 2), key=lambda u: self.qk_start[u])
        gb = self.qk_start[fb] - 1
        pts.append(dict(gap=gb, items=[("Q", 1)], bar=False, name="B", rd=[gb] * 8))
        if "C" in c.qreg:
            gc = self.qk_start[fc] - 1
            pts.append(dict(gap=gc, items=[("Q", 2)], bar=False, name="C"))
        else:
            gs = [p for p in pts if p["name"] == c.tq][0]["gap"]
            gc = gs - 24
            gc -= gc % 2 == 0
            pts.append(dict(gap=gc, items=[("Q", 2)], bar=False, name="C", rd=[gc + 2 + 2 * k for k in range(8)]))
        pts.sort(key=lambda p: p["gap"])
        order = [("K", 0), ("Q", 0)]
        for t in range(12):
            if t < 11:
                order.append(("K", t + 1))
            if t == a - 1 and not self.split:
                order.append(("Q", 1))
            order.append(("V", t))
            if t == a - 1 and self.split:
                order.append(("Q", 1))
            if t == c.tq and "C" not in c.qreg:
                order.append(("Q", 2))
        if a == 0:
            order.insert(2, ("Q", 1))
        if "C" in c.qreg:
            order.append(("Q", 2))
        after = {}
        for t in range(4, 8):
            after[("V", t)] = 1
        if "B" not in c.qreg:
            for t in range(8, 12):
                after[("K", t)] = a + 1
        for t in range(8, 12):
            after[("V", t)] = t - 8 + 2
        if "C" not in c.qreg:
            after[("Q", 2)] = max(4, a + 1)
            for it in (("K", 10), ("K", 11), ("V", 9), ("V", 10)):
                after[it] = c.tq
        return pts, order, after

    def body(self, setup):
        c, s = self.c, self.s
        pts, order, after = self.load_plan()
        self.landed, self.land_gap, self.qwait = {}, {}, {}
        chunks, ld, idx_end = [], {}, {}
        n = 0
        for it in order:
            ld[it] = []
            for m0, l in self.item_ops(it):
                for k, o in enumerate(l):
                    chunks.append([it, m0 if k == 0 else None, o])
                    ld[it].append(o)
                    n += 1
            idx_end[it] = n
        self.nxt = 0
        passed = {}

        def put(gaps, upto):
            todo = []
            k = self.nxt
            while k < min(upto, len(chunks)):
                it = chunks[k][0]
                if it in after and after[it] not in passed:
                    break
                todo.append(chunks[k])
                k += 1
            while k < len(chunks) and chunks[k][1] is None and todo and chunks[k][0] == todo[-1][0]:
                todo.append(chunks[k])
                k += 1
            self.nxt = k
            if not todo:
                return
            g2 = [g for g in gaps[1:] if g % 2 == 0][::max(1, c.dmasp // 2)] if gaps[0] >= 0 else gaps
            if len(g2) < len(todo):
                g2 = [g for g in gaps[1:] if g % 2 == 0]
            if len(g2) < len(todo):
                g2 = gaps[1:] or gaps
            x = len(g2) / len(todo)
            for i, (it, m0, o) in enumerate(todo):
                g = g2[i] if x >= 1 else g2[int(i * x)]
                if m0 is not None:
                    m0.pin = max(gaps[0], g - 1)
                    s.add(m0)
                    if it in after:
                        s.order(passed[after[it]], m0)
                o.pin = g
                s.add(o)

        def wait(gap, ops, lg=()):
            w = Op("", "wait", pin=gap)
            w.vm_targets = list(ops)
            w.lgkm_targets = list(lg)
            s.add(w)
            for o in list(ops) + list(lg):
                s.order(o, w)
            return w

        put([-1], c.W0)
        for text, kind, rd, wr in setup:
            s.add(Op(text, kind, rd, wr, pin=-1))
        allq = [ch[2] for ch in chunks]
        w = wait(-1, ld[("K", 0)])
        bar = s.add(Op("s_barrier", "barrier", pin=-1))
        s.order(w, bar)
        self.landed[("K", 0)], self.land_gap[("K", 0)] = bar, -1
        first = True
        for k in range(2, 10, 2):
            put([-1], k + c.W0)
            if first:
                self.pre_kfr = [self.k_frag(0, x, False) for x in range(c.D // 2)]
                first = False
            w = wait(-1, allq[k:k + 2])
        qrd = {}
        if "A" in c.qreg:
            self.qwait[0] = w
        else:
            qrd[0] = self.q_reads(0, w, [-1] * 8)
        put([-1], 10 + c.W0)

        todo_pts = list(pts)
        state = {"gap": 0}

        def points_before(pos):
            while todo_pts and todo_pts[0]["gap"] < pos:
                p = todo_pts.pop(0)
                x = max(idx_end[it] for it in p["items"])
                put(list(range(state["gap"], p["gap"])) or [p["gap"] - 1], x + c.W)
                assert self.nxt >= x, f"loads for point {p['name']} blocked"
                lg = qrd.get(2, []) if p["name"] == c.tq else []
                w = wait(p["gap"], [o for it in p["items"] for o in ld[it]], lg)
                if p["bar"]:
                    bb = s.add(Op("s_barrier", "barrier", pin=p["gap"], cost=c.cbar))
                    s.order(w, bb)
                    passed[p["name"]] = bb
                    for it in p["items"]:
                        self.landed[it], self.land_gap[it] = bb, p["gap"]
                else:
                    blk = p["items"][0][1]
                    if "rd" in p and "ABC"[blk] not in c.qreg:
                        qrd[blk] = self.q_reads(blk, w, p["rd"])
                    else:
                        self.qwait[blk] = w
                if c.sink and p["gap"] <= self.sink_end:
                    s.sinks[p["gap"]] = p["gap"] + (80 if p["name"] == "B" else 24)
                state["gap"] = p["gap"] + (0 if p["gap"] % 2 else 1)
                if not todo_pts or True:
                    pass

        self.sink_end = [p for p in pts if p["name"] == "B"][0]["gap"]
        firstqk = True
        for sg in self.seg:
            if sg[0] in ("qk", "qk2"):
                points_before(s.nm() + 0)
                if firstqk:
                    k_frag, pre = self.k_frag, list(self.pre_kfr)
                    self.k_frag = lambda t, x, j: pre[x] if x < len(pre) else k_frag(t, x, j)
                    self.qk(sg[1])
                    self.k_frag = k_frag
                    firstqk = False
                else:
                    self.qk(sg[1], sg[0] == "qk2")
            elif sg[0] == "sm":
                self.softmax(sg[1])
            elif sg[0] == "ls":
                points_before(s.nm() + 0)
                self.lsum(sg[1])
            elif sg[0] == "eh":
                self.epi_head(sg[1])
            elif sg[0] == "pv":
                points_before(s.nm() + 0)
                for g, ks, j in sg[1]:
                    self.pv_one(g, ks, j)
            elif sg[0] == "et":
                self.epi_tile(sg[1], sg[2])
        assert not todo_pts and self.nxt == len(chunks), (todo_pts, self.nxt, len(chunks))
        out = s.run(c.passes, c.spread)
        self.check()
        return out

    def check(self):
        bar_vm = bar_ds = -1
        content, reads = {}, {}
        for kind, tag, seq, vm_done, ds_done, g in self.s.events:
            if kind == "barrier":
                bar_vm, bar_ds = vm_done, ds_done
            elif tag[0] == "dma":
                for r in tag[1]:
                    if content.get(r, (None,))[0] != tag[2]:
                        assert all(x <= bar_ds for x in reads.get(r, [])), f"region {r} overwritten early by {tag[2]} in gap {g}"
                        reads[r] = []
                    content[r] = (tag[2], seq)
            else:
                for r in tag[1]:
                    assert content[r][0] == tag[2], f"region {r} holds {content[r][0]} when {tag[2]} is read in gap {g}"
                    assert content[r][1] <= (bar_vm if tag[3] else vm_done), f"{tag[2]} read before landing in gap {g}"
                    reads.setdefault(r, []).append(seq)

    def kernel(self):
        c = self.c
        k = c.name + "_kernel"
        self.plan()
        L = []
        A = L.append
        A("; GQA attention forward, one workgroup per (batch, q-head); generated by gen/gen3.py")
        A("; @launch grid=(256,1,1) block=(256,1,1) lds=163840")
        A('.amdgcn_target "amdgcn-amd-amdhsa--gfx950"')
        A(".text")
        A(f".globl {k}")
        A(".p2align 8")
        A(f".type {k},@function")
        A(f"{k}:")
        if c.stamps:
            A(f"s_memrealtime s[{S_STAMP}:{S_STAMP + 1}]")
        A(f"s_load_dwordx4 s[{S_KA}:{S_KA + 3}], s[0:1], 0")
        A(f"s_load_dwordx4 s[{S_KA + 4}:{S_KA + 7}], s[0:1], 16")
        A("s_cmp_ge_u32 s2, 256")
        A("s_cbranch_scc1 L_end")
        A("s_and_b32 s3, s2, 7")
        A("s_lshr_b32 s88, s2, 3")
        A("s_lshl_b32 s3, s3, 5")
        A("s_add_u32 s3, s3, s88")
        A("s_lshr_b32 s88, s3, 1")
        A(f"s_mul_i32 s89, s3, {HEAD_BYTES}")
        A(f"s_mul_i32 s88, s88, {HEAD_BYTES}")
        A("v_lshrrev_b32 v1, 6, v0")
        A("v_and_b32 v2, 63, v0")
        A("v_lshrrev_b32 v3, 4, v2")
        A(f"v_readfirstlane_b32 s31, v1")
        A("v_and_b32 v4, 15, v2")
        A("v_and_b32 v5, 1, v1")
        A("v_lshl_add_u32 v5, v5, 3, v3")
        A("v_xor_b32 v5, v5, v4")
        A("v_lshl_add_u32 v6, v1, 3, v3")
        A("v_lshlrev_b32 v6, 8, v6")
        A(f"v_lshl_add_u32 v{V_KD}, v5, 4, v6")
        for i in range(1, 4):
            A(f"v_xor_b32 v{V_KD + i}, {64 * i}, v{V_KD}")
        A("v_lshl_or_b32 v5, v3, 1, v3")
        A("v_and_b32 v5, 5, v5")
        A("v_xor_b32 v5, v5, v4")
        A(f"v_lshl_add_u32 v{V_VD}, v5, 4, v6")
        A(f"v_xor_b32 v{V_VD + 1}, 128, v{V_VD}")
        for t in range(12):
            A(f"s_mov_b32 s{S_T + t}, {t * KT}")
        A(f"s_lshl_b32 s{S_WL}, s31, 11")
        A(f"s_lshl_b32 s{S_QM}, s31, 13")
        A(f"s_mul_i32 s{S_QS}, s31, 6144")
        for i in range(1, 6):
            A(f"s_add_u32 s{S_QS + i}, s{S_QS}, {(i // 2) * 32768 + (i % 2) * 4096}")
        A("s_cmp_lt_u32 s31, 2")
        A(f"s_cselect_b32 s{S_DELTA}, {(Q_REG[2][0] - Q_REG[1][0]) * KT}, 0")
        A(f"s_add_u32 s{S_QCM}, s{S_QM}, s{S_DELTA}")
        A(f"s_add_u32 s{S_QCM}, s{S_QCM}, {Q_REG[1][0] * KT}")
        A(f"s_mov_b32 s{S_64K}, 65536")
        for r in (S_Q, S_K, S_V, S_O):
            A(f"s_mov_b32 s{r + 2}, {HEAD_BYTES}")
            A(f"s_mov_b32 s{r + 3}, 0x00020000")
        A(f"s_mov_b32 s{S_MODE}, 0")
        for b in range(3):
            A(f"v_mov_b32 v{V_MPRE[b]}, 0xff800000")
        A("v_cmp_gt_u32 vcc, 8, v4")
        A("v_mov_b32 v5, 0x3f803f80")
        A("s_nop 0")
        for i in range(4):
            A(f"v_cndmask_b32 v{V_ONE + i}, 0, v5, vcc")
            A(f"v_sub_u32 v{V_ONE + 4 + i}, v5, v{V_ONE + i}")
        A("v_lshlrev_b32 v7, 8, v4")
        A("v_lshl_add_u32 v5, v3, 4, v7")
        A(f"v_add_u32 v{V_QO}, s{S_QM}, v5")
        A("v_xor_b32 v5, v3, v4")
        A(f"v_lshl_add_u32 v{V_KA}, v5, 4, v7")
        for i in range(1, 4):
            A(f"v_xor_b32 v{V_KA + i}, {64 * i}, v{V_KA}")
        for i in range(4):
            A(f"v_add_u32 v{V_KH + i}, s{S_64K}, v{V_KA + i}")
        A("v_lshrrev_b32 v5, 2, v2")
        A("v_and_b32 v6, 6, v5")
        A("v_and_b32 v8, 1, v5")
        A("v_lshl_or_b32 v6, v6, 1, v8")
        A("v_and_b32 v8, 2, v2")
        A("v_xor_b32 v6, v6, v8")
        A("v_lshlrev_b32 v5, 8, v5")
        A("v_lshl_add_u32 v5, v6, 4, v5")
        A("v_and_b32 v6, 1, v2")
        A("v_lshl_add_u32 v5, v6, 3, v5")
        A(f"v_add_u32 v{V_VA}, {VBASE}, v5")
        for j in range(1, 8):
            A(f"v_xor_b32 v{V_VA + j}, {64 * (j // 2) + 16 * (j % 2)}, v{V_VA}")
        A(f"s_mov_b32 s{S_C}, {f32(C_SCALE):#x}")
        A(f"s_mov_b32 s{S_NC}, {f32(-C_SCALE):#x}")
        A(f"s_mov_b32 s{S_THR}, {f32(c.thr):#x}")
        for b in range(3):
            A(f"s_mov_b32 s{S_ST2 + b}, {b * 32768 + 4096}")
        A("s_waitcnt lgkmcnt(0)")
        for r, p, off in ((S_K, S_KA + 2, 88), (S_Q, S_KA, 89), (S_V, S_KA + 4, 88), (S_O, S_KA + 6, 89)):
            A(f"s_add_u32 s{r}, s{p}, s{off}")
            A(f"s_addc_u32 s{r + 1}, s{p + 1}, 0")
        if c.stamps:
            A(f"s_memrealtime s[{S_STAMP + 2}:{S_STAMP + 3}]")
        A("L_start:")
        setup = [(f"s_mov_b64 s[{S_FAIL}:{S_FAIL + 1}], 0", "salu", [], [f"s{S_FAIL}"]),
                 (f"s_lshr_b32 s31, s{S_WL}, 4", "salu", [], ["s31", "scc"]),
                 ("s_and_b32 s31, s31, 128", "salu", ["s31"], ["s31", "scc"]),
                 (f"s_add_u32 s47, s{S_QM}, {Q_REG[0][0] * KT}", "salu", [], ["s47", "scc"])]
        for i in range(4):
            setup.append((f"v_xor_b32 v{V_QR + i}, s31, v{V_KA + i}", "valu", ["s31"], [f"v{V_QR + i}"]))
        for i in range(4):
            setup.append((f"v_add_u32 v{V_QR + i}, s47, v{V_QR + i}", "valu", ["s47", f"v{V_QR + i}"], [f"v{V_QR + i}"]))
        L += self.body(setup)
        ns = len(c.stamps)
        assert ns <= 12
        if c.stamps:
            A(f"s_memrealtime s[{S_STAMP + 4 + 2 * ns}:{S_STAMP + 5 + 2 * ns}]")
        A("s_nop 1")
        A(f"s_cmp_lg_u64 s[{S_FAIL}:{S_FAIL + 1}], 0")
        A("s_cselect_b32 s84, 1, 0")
        A(f"s_lshr_b32 s85, s{S_WL}, 9")
        A("v_mov_b32 v128, s84")
        A("v_mov_b32 v129, s85")
        A("v_mov_b32 v130, 0")
        A("s_barrier")
        A("ds_write_b32 v129, v128")
        A("s_waitcnt lgkmcnt(0)")
        A("s_barrier")
        A("ds_read_b128 v[132:135], v130")
        A("s_waitcnt lgkmcnt(0)")
        A("v_or_b32 v132, v132, v133")
        A("v_or3_b32 v132, v132, v134, v135")
        A("s_nop 0")
        A("v_readfirstlane_b32 s84, v132")
        A("s_nop 0")
        A(f"s_andn2_b32 s84, s84, s{S_MODE}")
        A("s_cbranch_scc1 L_fallback")
        if c.stamps:
            A("s_waitcnt vmcnt(0)")
            A(f"s_memrealtime s[{S_STAMP + 6 + 2 * ns}:{S_STAMP + 7 + 2 * ns}]")
            A(f"s_load_dwordx2 s[80:81], s[0:1], {40 if c.stamp_dst == 'ws' else 32}")
            A("s_waitcnt lgkmcnt(0)")
            if c.pad >= 0:
                A("L_pad:")
                A("s_memrealtime s[84:85]")
                A("s_waitcnt lgkmcnt(0)")
                A(f"s_sub_u32 s84, s84, s{S_STAMP + 2 * c.pad}")
                A("s_cmp_lt_u32 s84, 6000")
                A("s_cbranch_scc1 L_pad")
            A("s_mov_b32 s82, " + ("0x10000000" if c.stamp_dst == "ws" else "256"))
            A("s_mov_b32 s83, 0x00020000")
            A(f"s_lshr_b32 s85, s{S_WL}, 5")
            A("s_lshl_b32 s84, s2, 8")
            A("s_add_u32 s84, s84, s85")
            A("v_mov_b32 v129, s84")
            for i in range(ns + 4):
                A(f"v_mov_b32 v128, s{S_STAMP + 2 * i}")
                A(f"buffer_store_dword v128, v129, s[80:83], 0 offen offset:{4 * i} sc1")
        A("L_end:")
        A("s_endpgm")
        A("L_fallback:")
        A("s_waitcnt vmcnt(0)")
        A(f"v_and_b32 v140, 0x1fff, v{V_QO}")
        for b in range(3):
            for f in range(8):
                so = S_T + 4 * b if f < 4 else S_ST2 + b
                A(f"buffer_load_dwordx4 v[{64 + 4 * f}:{67 + 4 * f}], v{V_QO}, s[{S_Q}:{S_Q + 3}], s{so} offen offset:{64 * (f % 4)}")
            for h in range(2):
                A(f"v_mov_b32 v{8 + h}, 0xff800000")
            A("s_mov_b32 s84, 0")
            A(f"L_fb{b}:")
            for f in range(4):
                A(f"buffer_load_dwordx4 v[{96 + 4 * f}:{99 + 4 * f}], v140, s[{S_K}:{S_K + 3}], s84 offen offset:{64 * f}")
            A("s_waitcnt vmcnt(0)")
            for f in range(8):
                h = f // 4
                A(f"{MF} v[{4 * h}:{4 * h + 3}], v[{96 + 4 * (f % 4)}:{99 + 4 * (f % 4)}], v[{64 + 4 * f}:{67 + 4 * f}], {'0' if f % 4 == 0 else f'v[{4 * h}:{4 * h + 3}]'}")
            A("s_nop 15")
            for i in range(4):
                A(f"v_max3_f32 v{8 + i // 2}, v{8 + i // 2}, v{2 * i}, v{2 * i + 1}")
            A("s_add_u32 s84, s84, 4096")
            A(f"s_cmp_lt_u32 s84, {12 * KT}")
            A(f"s_cbranch_scc1 L_fb{b}")
            A("s_nop 1")
            A("v_permlane32_swap_b32 v8, v9")
            A("v_max_f32 v8, v8, v9")
            A("v_mov_b32 v9, v8")
            A("s_nop 1")
            A("v_permlane16_swap_b32 v8, v9")
            A(f"v_max_f32 v{V_MPRE[b]}, v8, v9")
        A(f"s_mov_b32 s{S_MODE}, 1")
        A("s_barrier")
        A("s_branch L_start")
        if c.cyc:
            L = [x.replace("s_memrealtime", "s_memtime") for x in L]
        body = "\n".join(x if x.endswith(":") or x.startswith((";", ".")) else "    " + x for x in L)
        body += f"""
.section .rodata,"a"
.p2align 6
.amdhsa_kernel {k}
  .amdhsa_next_free_vgpr 512
  .amdhsa_next_free_sgpr 96
  .amdhsa_accum_offset 256
  .amdhsa_group_segment_fixed_size 0
  .amdhsa_kernarg_size 48
  .amdhsa_user_sgpr_count 2
  .amdhsa_user_sgpr_kernarg_segment_ptr 1
  .amdhsa_system_sgpr_workgroup_id_x 1
  .amdhsa_float_denorm_mode_32 3
.end_amdhsa_kernel
"""
        return body


def parse(args):
    kw = {}
    for a in args:
        k, v = a.split("=", 1)
        d = getattr(Cfg, k)
        if isinstance(d, tuple):
            v = tuple(int(x) for x in v.split(",") if x)
        elif isinstance(d, (int, float)):
            v = type(d)(v)
        kw[k] = v
    return kw


if __name__ == "__main__":
    out = sys.argv[1]
    g = Gen(Cfg(**parse(sys.argv[2:])))
    txt = g.kernel()
    open(out, "w").write(txt)
    gc = g.s.gapcost
    print(out, "mfma", g.s.nm(), g.s.stats, "pre", gc[0], file=sys.stderr)
    ch = "0123456789abcdefghijklmnopqrstuvwxyz"
    for i in range(1, len(gc), 128):
        print(f"{i - 1:4d} " + "".join(ch[min(35, x)] for x in gc[i:i + 128]), file=sys.stderr)
    print("stores", sorted(x for x in g.st_pin.values() if x is not None), file=sys.stderr)
```

```python
import struct
import sys
from sched2 import Op, Sched, R, rng

NAME = "standalone__gqa_softmax__near_ridge"
HEAD_BYTES = 384 * 256
KT = 8192
VBASE = 12 * KT


def f32(x):
    return struct.unpack("<I", struct.pack("<f", x))[0]


C_SCALE = 1.4426950408889634 * (128 ** -0.5)

S_Q, S_K, S_V, S_O = 4, 8, 12, 16
S_C, S_NC, S_WL, S_MODE, S_FAIL, S_THR = 20, 21, 22, 23, 24, 26
S_QM, S_QCM, S_DELTA, S_64K = 27, 28, 29, 30
S_T = 32
S_ST2 = 44
S_STAMP = 48
S_KA = 80
S_QS = 90
V_O = {"X": 0, "Y": 64}
V_S = {"X": 128, "Y": 160}
V_P = {"X": 192, "Y": 200}
V_KA, V_KH, V_QR, V_VA = 208, 212, 216, 220
V_KD, V_VD, V_OO, V_QO = 228, 232, 234, 234
V_MC = {"X": 236, "Y": 238}
V_MPRE = {0: 236, 1: 238, 2: 235}
V_L = {"X": 240, "Y": 244}
V_ONE = 248
MF = "v_mfma_f32_16x16x32_bf16"
A_VREG = 0
A_Q = {0: 128, 1: 160, 2: 192}
A_RING, NRING = 224, 8
STREAM = {0: "X", 1: "Y", 2: "X"}
NRES = 4
Q_REG = {0: [16, 17, 18, 19], 1: [8, 9, 10, 11], 2: [13, 14, 10, 11]}


class Cfg:
    a = 2
    b = 2
    split = 1
    D = 12
    Dj = 12
    W = 12
    W0 = 12
    tq = 7
    qreg = ""
    defer = (2, 2, 2, 2)
    cdma = 1
    cst = 5
    cbar = 2
    stsp = 16
    dmasp = 4
    sink = 1
    lsum = 1
    passes = 6
    spread = 24
    ld = ""
    qf = ""
    st = "sc1"
    stamps = ()
    gst = ()
    stamp_dst = "ws"
    thr = 2.0 ** 24
    budget = 3
    floor = 2
    lge = 4
    name = NAME
    pad = -1
    cyc = 0
    dsame = 0
    stlin = 0
    stc = "="
    pf = 0
    pf2 = ()
    pfs = 2
    wb = ()
    wbsel = 31

    def __init__(self, **kw):
        for k, v in kw.items():
            assert hasattr(self, k), k
            setattr(self, k, v)


def fl(x):
    return (" " + x.replace("+", " ")) if x else ""


class Gen:
    def __init__(self, cfg):
        self.c = cfg
        self.s = Sched(cfg.budget, cfg.floor, cfg.lge)
        self.ring = 0

    def plan(self):
        c = self.c
        a, b = c.a, c.b
        G = [[(0, t)] for t in range(a)]
        G += [[(0, t), (1, t)] for t in range(a, 12)]
        G += [[(1, t)] for t in range(b)]
        G += [[(1, t), (2, t)] for t in range(b, a)]
        G += [[(2, t)] for t in list(range(b)) + list(range(a, 12))]
        self.G = G
        self.ucount, cnt = {}, {0: 0, 1: 0, 2: 0}
        for g in G:
            for u in g:
                self.ucount[u] = cnt[u[0]]
                cnt[u[0]] += 1
        n = len(G)
        self.split = c.split and 1 <= a <= NRES
        seg = [("qk", G[0])]
        late = {j: [] for j in range(4)}
        for i in range(n):
            sp = self.split and i + 1 == a
            if i + 1 < n:
                seg.append(("qk", G[i + 1][:1] if sp else G[i + 1]))
            if not (self.split and i == a):
                seg.append(("sm", G[i]))
            else:
                seg.append(("sm", G[i][1:]))
            done = [blk for blk, t in G[i] if self.ucount[(blk, t)] == 11]
            now = [j for j in range(4) if n - i > c.defer[j]]
            for j in range(4):
                if j not in now:
                    assert len(G[i]) == 1 and G[i][0][0] == 2
                    late[j].append(G[i])
            after = G[i][-1][0] == 2 and self.ucount[G[i][-1]] == 0
            if c.lsum and not after:
                seg.append(("ls", G[i]))
            for blk in done:
                seg.append(("eh", blk))
            seg.append(("pv", [(G[i], ks, j) for j in now for ks in range(2)]))
            if c.lsum and after:
                seg.append(("ls", G[i]))
            for blk in done:
                if blk != 2:
                    for j in range(4):
                        seg.append(("et", blk, j))
            if sp:
                seg.append(("sm", G[i + 1][:1]))
                seg.append(("qk2", G[i + 1][1:]))
        for j in range(4):
            seg.append(("pv", [(g, ks, j) for g in late[j] for ks in range(2)]))
            seg.append(("et", 2, j))
        self.seg = seg
        pos = 0
        self.qk_start, self.pv_start, self.o_first, self.o_last, self.o_unit = {}, {}, {}, {}, {}
        for sg in seg:
            if sg[0] in ("qk", "qk2"):
                for u in sg[1]:
                    self.qk_start[u] = pos
                pos += 16 * len(sg[1])
            elif sg[0] == "ls":
                pos += 2 * len(sg[1])
            elif sg[0] == "pv":
                for g, ks, j in sg[1]:
                    for u in g:
                        self.pv_start.setdefault(u, pos)
                        self.o_first.setdefault((u[0], j), pos)
                        self.o_unit.setdefault((u[0], j), u)
                        self.o_last[(u[0], j)] = pos + 1
                        pos += 2
        self.nm = pos
        if c.gst:
            st = [self.qk_start[G[i][-1]] for i in c.gst]
            assert len(set(st)) == len(st)
            c.stamps = tuple(st)
        self.pb = {}
        pool = [V_P["X"], V_P["Y"]] + [V_S["Y"] + 8 * k for k in range(4)] + [V_O["Y"] + 8 * k for k in range(8)]
        nd = max(c.defer)
        prev = None
        for i, g in enumerate(G):
            if len(g) == 2:
                for u in g:
                    self.pb[u] = V_P[STREAM[u[0]]]
                prev = None
            elif n - i <= nd:
                k = i - (n - nd)
                first = 1 if prev == V_P["X"] else 0
                if k == 0:
                    self.pool_order = [pool[first], pool[1 - first]] + pool[2:]
                    if nd > 2:
                        self.pool_order = pool[2:nd] + self.pool_order[:2]
                self.pb[g[0]] = self.pool_order[k]
            else:
                u = g[0]
                own, other = V_P[STREAM[u[0]]], V_P["Y" if STREAM[u[0]] == "X" else "X"]
                if i < a:
                    p = other if (a - i) % 2 == 1 else own
                else:
                    p = other if prev == own else own
                self.pb[u] = prev = p
        self.st_pin = {}
        last = -100
        for blk in range(3):
            keys = [(j, h) for j in range(4) for h in range(2)]
            lo = {k: self.o_last[(blk, k[0])] + 12 + 4 * k[1] for k in keys}
            if blk == 0:
                hi = {k: self.o_first[(2, k[0])] - 1 for k in keys}
                t0, t1 = lo[keys[0]], hi[keys[-1]]
                sp = min(c.stsp, (t1 - t0) / 7)
                p = {k: min(hi[k], max(lo[k], round(t0 + sp * x))) for x, k in enumerate(keys)}
            elif blk == 1:
                p = {}
                for k in keys:
                    last = p[k] = max(lo[k], last + c.stsp)
            else:
                p = {k: (lo[k] if lo[k] < self.nm - 1 else None) for k in keys}
            for k in keys:
                self.st_pin[(blk,) + k] = p[k]
            last = max(x for x in p.values() if x is not None)

    def vreg(self, t):
        return 12 + t % 8

    def item_ops(self, it):
        c = self.c
        if it[0] == "Q":
            blk = it[1]
            if "ABC"[blk] in c.qreg:
                so = "0" if blk == 0 else f"s{S_T + 4 * blk}"
                return [(None, [Op(f"buffer_load_dwordx4 {rng('a', A_Q[blk] + 4 * s, 4)}, v{V_QO}, s[{S_Q}:{S_Q + 3}], {so} offen offset:{32 * s}{fl(c.qf)}",
                                   "vld", [f"v{V_QO}"], R("a", A_Q[blk] + 4 * s, 4), cost=c.cdma) for s in range(8)])]
            res = []
            for half in range(2):
                base, imm = (S_QCM, 0) if blk == 2 else (S_QM, Q_REG[blk][0] * KT)
                m0 = Op(f"s_add_u32 m0, s{base}, {imm + 4096 * half}", "salu", [f"s{base}"], ["m0", "scc"])
                ld = [Op(f"buffer_load_dwordx4 v{V_KD + i}, s[{S_Q}:{S_Q + 3}], s{S_QS + 2 * blk + half} offen offset:{1024 * i}{fl(c.qf)} lds",
                         "vld", [f"v{V_KD + i}", "m0"], [], cost=c.cdma, tag=("dma", tuple(Q_REG[blk]), it)) for i in range(4)]
                res.append((m0, ld))
            return res
        which, t = it
        if which == "K":
            reg, srd, vo = t, S_K, (V_KD, V_KD + 1)
        else:
            reg, srd, vo = self.vreg(t), S_V, (V_VD, V_VD + 1)
        m0 = Op(f"s_add_u32 m0, s{S_WL}, {reg * KT}", "salu", [f"s{S_WL}"], ["m0", "scc"])
        ld = [Op(f"buffer_load_dwordx4 v{vo[j]}, s[{srd}:{srd + 3}], s{S_T + (0 if c.dsame else t)} offen offset:{1024 * j}{fl(c.ld)} lds",
                 "vld", [f"v{vo[j]}", "m0"], [], cost=c.cdma, tag=("dma", (reg,), it)) for j in range(2)]
        return [(m0, ld)]

    def ring_slot(self):
        r = A_RING + 4 * self.ring
        self.ring = (self.ring + 1) % NRING
        return r

    def frag_pin(self, joint):
        return max(-1, self.s.nm() - (self.c.Dj if joint else self.c.D))

    def k_frag(self, t, s, joint):
        r = self.ring_slot()
        base = V_KH if t >= 8 else V_KA
        o = self.s.add(Op(f"ds_read_b128 {rng('a', r, 4)}, v{base + s % 4} offset:{(t % 8) * KT + 4096 * (s // 4)}", "ds",
                          [f"v{base + s % 4}"], R("a", r, 4), pin=max(self.frag_pin(joint), self.land_gap[("K", t)]),
                          tag=("rd", (t,), ("K", t), True)))
        self.s.order(self.landed[("K", t)], o)
        return r

    def v_frag(self, t, ks, j, first_pass, joint):
        res = t < NRES
        dt = 2 * j + ks
        r = A_VREG + 32 * t + 4 * dt if res else None
        if res and not first_pass:
            return r
        if not res:
            r = self.ring_slot()
        for jj in range(2):
            off = self.vreg(t) * KT - VBASE + jj * 4096
            o = self.s.add(Op(f"ds_read_b64_tr_b16 {rng('a', r + 2 * jj, 2)}, v{V_VA + dt} offset:{off}", "ds",
                              [f"v{V_VA + dt}"], R("a", r + 2 * jj, 2), pin=max(self.frag_pin(joint), self.land_gap[("V", t)]),
                              tag=("rd", (self.vreg(t),), ("V", t), True)))
            self.s.order(self.landed[("V", t)], o)
        return r

    def q_reads(self, blk, wait, gaps):
        res = []
        for s in range(8):
            o = self.s.add(Op(f"ds_read_b128 {rng('a', A_Q[blk] + 4 * s, 4)}, v{V_QR + s % 4} offset:{4096 * (s // 4)}", "ds", [f"v{V_QR + s % 4}"],
                              R("a", A_Q[blk] + 4 * s, 4), pin=gaps[s], tag=("rd", tuple(Q_REG[blk]), ("Q", blk), False)))
            self.s.order(wait, o)
            res.append(o)
        nxt = {0: f"v_subrev_u32 v{{0}}, s{S_64K}, v{{0}}", 1: f"v_add_u32 v{{0}}, s{S_DELTA}, v{{0}}"}.get(blk)
        if nxt and any("ABC"[k] not in self.c.qreg for k in range(blk + 1, 3)):
            for s in range(4):
                self.s.add(Op(nxt.format(V_QR + s), "valu", [f"v{V_QR + s}"], [f"v{V_QR + s}"]))
        return res

    def sbuf(self, blk, t):
        return V_S[STREAM[blk]] + 16 * (self.ucount[(blk, t)] % 2)

    def qk(self, grp, reuse=False):
        t = grp[0][1]
        if not reuse:
            self.kfr = []
        for s in range(8):
            if not reuse:
                self.kfr.append(self.k_frag(t, s, len(grp) > 1))
            a = self.kfr[s]
            kh, s4 = s // 4, s % 4
            for blk, _ in grp:
                for qh in range(2):
                    d = self.sbuf(blk, t) + 8 * qh + 4 * kh
                    q = A_Q[blk] + 16 * qh + 4 * s4
                    cs = "0" if s4 == 0 else rng("v", d, 4)
                    srcc = [] if s4 == 0 else R("v", d, 4)
                    m = self.s.add(Op(f"{MF} {rng('v', d, 4)}, {rng('a', a, 4)}, {rng('a', q, 4)}, {cs}",
                                      "mfma", R("a", a, 4) + R("a", q, 4) + srcc, R("v", d, 4), srcc=srcc, passes=4))
                    self.hook(m)

    def pv_one(self, units, ks, j):
        t = units[0][1]
        a = self.v_frag(t, ks, j, units[0][0] == 0, len(units) > 1)
        for blk, _ in units:
            for qh in range(2):
                d = V_O[STREAM[blk]] + 16 * j + 8 * qh + 4 * ks
                p = self.pb[(blk, t)] + 4 * qh
                first = self.o_unit[(blk, j)] == (blk, t)
                cs = "0" if first else rng("v", d, 4)
                srcc = [] if first else R("v", d, 4)
                m = self.s.add(Op(f"{MF} {rng('v', d, 4)}, {rng('a', a, 4)}, {rng('v', p, 4)}, {cs}",
                                  "mfma", R("a", a, 4) + R("v", p, 4) + srcc, R("v", d, 4), srcc=srcc, passes=4))
                self.hook(m)

    def lsum(self, grp):
        for blk, t in grp:
            d = V_L[STREAM[blk]]
            for qh in range(2):
                p, a = self.pb[(blk, t)] + 4 * qh, V_ONE + 4 * qh
                first = self.ucount[(blk, t)] == 0 and qh == 0
                cs = "0" if first else rng("v", d, 4)
                srcc = [] if first else R("v", d, 4)
                m = self.s.add(Op(f"{MF} {rng('v', d, 4)}, {rng('v', a, 4)}, {rng('v', p, 4)}, {cs}",
                                  "mfma", R("v", p, 4) + srcc, R("v", d, 4), srcc=srcc, passes=4))
                self.hook(m)

    def reduce4(self, x, y, op):
        add = self.s.add
        add(Op(f"v_permlane32_swap_b32 {x}, {y}", "perm", [x, y], [x, y], cost=2))
        add(Op(f"{op} {x}, {x}, {y}", "valu", [x, y], [x]))
        add(Op(f"v_mov_b32 {y}, {x}", "valu", [x], [y]))
        add(Op(f"v_permlane16_swap_b32 {x}, {y}", "perm", [x, y], [x, y], cost=2))
        add(Op(f"{op} {x}, {x}, {y}", "valu", [x, y], [x]))

    def spread2(self, x, y):
        add = self.s.add
        add(Op(f"v_mov_b32 {y}, {x}", "valu", [x], [y]))
        add(Op(f"v_permlane32_swap_b32 {x}, {y}", "perm", [x, y], [x, y], cost=2))

    def softmax(self, grp):
        add = self.s.add
        for blk, t in grp:
            st = STREAM[blk]
            sb, mc = self.sbuf(blk, t), V_MC[st]
            if self.ucount[(blk, t)] == 0:
                for k in range(4):
                    for qh in range(2):
                        sv = [f"v{sb + 8 * qh + i}" for i in range(8)]
                        tt = f"v{self.pb[(blk, t)] + qh}"
                        if k == 3:
                            add(Op(f"v_max_f32 {tt}, {tt}, {sv[7]}", "valu", [tt, sv[7]], [tt]))
                            continue
                        src = sv[0:3] if k == 0 else [tt, sv[1 + 2 * k], sv[2 + 2 * k]]
                        add(Op(f"v_max3_f32 {tt}, {src[0]}, {src[1]}, {src[2]}", "valu", src, [tt]))
                t0, t1 = f"v{self.pb[(blk, t)]}", f"v{self.pb[(blk, t)] + 1}"
                self.reduce4(t0, t1, "v_max_f32")
                add(Op(f"v_max_f32 {t0}, {t0}, v{V_MPRE[blk]}", "valu", [t0, f"v{V_MPRE[blk]}"], [t0]))
                add(Op(f"v_mul_f32 v{mc}, s{S_NC}, {t0}", "valu", [t0], [f"v{mc}"]))
                self.spread2(f"v{mc}", f"v{mc + 1}")
        for kh in range(2):
            for i in range(2):
                for blk, t in grp:
                    for qh in range(2):
                        st = STREAM[blk]
                        sb, l, mc = self.sbuf(blk, t), f"v{V_L[st] + qh}", f"v{V_MC[st] + qh}"
                        first = self.ucount[(blk, t)] == 0 and kh == 0 and i == 0
                        e = [f"v{sb + 8 * qh + 4 * kh + 2 * i + k}" for k in range(2)]
                        for x in e:
                            add(Op(f"v_fma_f32 {x}, {x}, s{S_C}, {mc}", "valu", [x, mc], [x]))
                        for x in e:
                            add(Op(f"v_exp_f32 {x}, {x}", "trans", [x], [x], cost=2))
                        pr = f"v{self.pb[(blk, t)] + 4 * qh + 2 * kh + i}"
                        add(Op(f"v_cvt_pk_bf16_f32 {pr}, {e[0]}, {e[1]}", "valu", e, [pr]))
                        if self.c.lsum:
                            continue
                        if first:
                            add(Op(f"v_add_f32 {l}, {e[0]}, {e[1]}", "valu", e, [l]))
                        else:
                            for x in e:
                                add(Op(f"v_add_f32 {l}, {l}, {x}", "valu", [x, l], [l]))

    def epi_head(self, blk):
        add = self.s.add
        st = STREAM[blk]
        a, b, r = f"v{V_L[st]}", f"v{V_L[st] + 1}", V_L[st] + 2
        if not self.c.lsum:
            self.reduce4(a, b, "v_add_f32")
        add(Op(f"v_rcp_f32 v{r}, {a}", "trans", [a], [f"v{r}"], cost=2))
        self.spread2(f"v{r}", f"v{r + 1}")
        due = self.o_last[(blk, 3)] + 8
        add(Op(f"v_cmp_nge_f32 vcc, s{S_THR}, {a}", "valu", [a], ["vcc"], due=due))
        add(Op(f"s_or_b64 s[{S_FAIL}:{S_FAIL + 1}], s[{S_FAIL}:{S_FAIL + 1}], vcc", "salu2", ["vcc", f"s{S_FAIL}"], [f"s{S_FAIL}", "scc"], due=due + 1))

    def epi_tile(self, blk, j):
        add = self.s.add
        st = STREAM[blk]
        o = V_O[st] + 16 * j
        for h in range(2):
            r = f"v{V_L[st] + 2 + h}"
            for i in range(4 * h, 4 * h + 4):
                x, y = f"v{o + 2 * i}", f"v{o + 2 * i + 1}"
                add(Op(f"v_mul_f32 {x}, {r}, {x}", "valu", [x, r], [x]))
                add(Op(f"v_mul_f32 {y}, {r}, {y}", "valu", [y, r], [y]))
                add(Op(f"v_cvt_pk_bf16_f32 v{o + 8 * h + i % 4}, {x}, {y}", "valu", [x, y], [f"v{o + 8 * h + i % 4}"]))
            for i in range(2):
                x, y = f"v{o + 8 * h + i}", f"v{o + 8 * h + 2 + i}"
                add(Op(f"v_permlane16_swap_b32 {x}, {y}", "perm", [x, y], [x, y], cost=2))
            so = (f"s{S_T + 4 * blk}" if blk else "0") if h == 0 else f"s{S_ST2 + blk}"
            add(Op(f"buffer_store_dwordx4 {rng('v', o + 8 * h, 4)}, v{V_OO}, s[{S_O}:{S_O + 3}], {so} offen offset:{self.st_off(j)}{fl(self.c.st if blk < 2 or self.c.stc == '=' else self.c.stc)}",
                   "vst", R("v", o + 8 * h, 4) + [f"v{V_OO}"], [], cost=self.c.cst, pin=self.st_pin[(blk, j, h)]))

    def st_off(self, j):
        return {0: 64 * j, 1: 1024 * j, 2: 128 * (j % 2) + 2048 * (j // 2)}[self.c.stlin]

    def hook(self, m):
        if m.mi in self.c.pf2:
            r = (V_KD + 2, V_QR, V_QR + 2)[list(self.c.pf2).index(m.mi)]
            assert self.nxt >= self.qc_end and (r == V_KD + 2 or self.qc_read)
            a, b = f"v{r}", f"v{r + 1}"
            self.s.add(Op(f"v_add_u32 {a}, s98, v{V_KD}", "valu", [f"v{V_KD}"], [a], early=m.mi - 4))
            self.s.add(Op(f"v_mov_b32 {b}, 0", "valu", [], [b], early=m.mi - 4))
            self.s.add(Op(f"v_min_u32 {a}, L_end-L_pc, {a}", "valu", [a], [a]))
            self.s.add(Op(f"v_lshl_add_u64 v[{r}:{r + 1}], v[{r}:{r + 1}], 0, s[96:97]", "valu", [a, b], [a, b]))
            self.s.add(Op(f"global_load_dword {a}, v[{r}:{r + 1}], off", "vld", [a, b], [a], cost=2, pin=m.mi))
        if m.mi in self.c.wb:
            self.s.add(Op(f"s_cmp_eq_u32 s3, 0\n    s_cbranch_scc1 L_wb{m.mi}\n    buffer_wbl2 sc1\nL_wb{m.mi}:", "salu2", [], ["scc"], cost=3, pin=m.mi))
        if m.mi in self.c.stamps:
            k = list(self.c.stamps).index(m.mi)
            self.s.add(Op(f"s_memrealtime s[{S_STAMP + 4 + 2 * k}:{S_STAMP + 5 + 2 * k}]", "salu", [], [], pin=m.mi))

    def load_plan(self):
        c, a, G = self.c, self.c.a, self.G
        joint = lambda t: t >= a
        dk = lambda t: c.Dj if joint(t) and not (self.split and t == a) else c.D
        pts = []
        for t in range(12):
            its = ([("K", t + 1)] if t < 11 else []) + [("V", t)]
            if t < 11:
                gap = self.qk_start[(0, t + 1)] - dk(t + 1) - 1
            else:
                gap = self.pv_start[(0, t)] - (c.Dj if joint(t) else c.D) - 1
            if not self.split and t == a - 1 and t < 11:
                pts.append(dict(gap=gap, items=its[:1], bar=True, name=t - 0.5))
                gap = self.pv_start[(0, t)] - c.D - 1
                its = its[1:]
            pts.append(dict(gap=gap, items=its, bar=True, name=t))
        fb = min((u for u in self.qk_start if u[0] == 1), key=lambda u: self.qk_start[u])
        fc = min((u for u in self.qk_start if u[0] == 2), key=lambda u: self.qk_start[u])
        gb = self.qk_start[fb] - 1
        pts.append(dict(gap=gb, items=[("Q", 1)], bar=False, name="B", rd=[gb] * 8))
        if "C" in c.qreg:
            gc = self.qk_start[fc] - 1
            pts.append(dict(gap=gc, items=[("Q", 2)], bar=False, name="C"))
        else:
            gs = [p for p in pts if p["name"] == c.tq][0]["gap"]
            gc = gs - 24
            gc -= gc % 2 == 0
            pts.append(dict(gap=gc, items=[("Q", 2)], bar=False, name="C", rd=[gc + 2 + 2 * k for k in range(8)]))
        pts.sort(key=lambda p: p["gap"])
        order = [("K", 0), ("Q", 0)]
        for t in range(12):
            if t < 11:
                order.append(("K", t + 1))
            if t == a - 1 and not self.split:
                order.append(("Q", 1))
            order.append(("V", t))
            if t == a - 1 and self.split:
                order.append(("Q", 1))
            if t == c.tq and "C" not in c.qreg:
                order.append(("Q", 2))
        if a == 0:
            order.insert(2, ("Q", 1))
        if "C" in c.qreg:
            order.append(("Q", 2))
        after = {}
        for t in range(4, 8):
            after[("V", t)] = 1
        if "B" not in c.qreg:
            for t in range(8, 12):
                after[("K", t)] = a + 1
        for t in range(8, 12):
            after[("V", t)] = t - 8 + 2
        if "C" not in c.qreg:
            after[("Q", 2)] = max(4, a + 1)
            for it in (("K", 10), ("K", 11), ("V", 9), ("V", 10)):
                after[it] = c.tq
        return pts, order, after

    def body(self, setup):
        c, s = self.c, self.s
        pts, order, after = self.load_plan()
        self.landed, self.land_gap, self.qwait = {}, {}, {}
        chunks, ld, idx_end = [], {}, {}
        n = 0
        for it in order:
            ld[it] = []
            for m0, l in self.item_ops(it):
                for k, o in enumerate(l):
                    chunks.append([it, m0 if k == 0 else None, o])
                    ld[it].append(o)
                    n += 1
            idx_end[it] = n
        self.nxt = 0
        self.qc_end, self.qc_read = idx_end[("Q", 2)], False
        passed = {}

        def put(gaps, upto):
            todo = []
            k = self.nxt
            while k < min(upto, len(chunks)):
                it = chunks[k][0]
                if it in after and after[it] not in passed:
                    break
                todo.append(chunks[k])
                k += 1
            while k < len(chunks) and chunks[k][1] is None and todo and chunks[k][0] == todo[-1][0]:
                todo.append(chunks[k])
                k += 1
            self.nxt = k
            if not todo:
                return
            g2 = [g for g in gaps[1:] if g % 2 == 0][::max(1, c.dmasp // 2)] if gaps[0] >= 0 else gaps
            if len(g2) < len(todo):
                g2 = [g for g in gaps[1:] if g % 2 == 0]
            if len(g2) < len(todo):
                g2 = gaps[1:] or gaps
            x = len(g2) / len(todo)
            for i, (it, m0, o) in enumerate(todo):
                g = g2[i] if x >= 1 else g2[int(i * x)]
                if m0 is not None:
                    m0.pin = max(gaps[0], g - 1)
                    s.add(m0)
                    if it in after:
                        s.order(passed[after[it]], m0)
                o.pin = g
                s.add(o)

        def wait(gap, ops, lg=()):
            w = Op("", "wait", pin=gap)
            w.vm_targets = list(ops)
            w.lgkm_targets = list(lg)
            s.add(w)
            for o in list(ops) + list(lg):
                s.order(o, w)
            return w

        put([-1], c.W0)
        for text, kind, rd, wr in setup:
            s.add(Op(text, kind, rd, wr, pin=-1))
        allq = [ch[2] for ch in chunks]
        w = wait(-1, ld[("K", 0)])
        bar = s.add(Op("s_barrier", "barrier", pin=-1))
        s.order(w, bar)
        self.landed[("K", 0)], self.land_gap[("K", 0)] = bar, -1
        first = True
        for k in range(2, 10, 2):
            put([-1], k + c.W0)
            if first:
                self.pre_kfr = [self.k_frag(0, x, False) for x in range(c.D // 2)]
                first = False
            w = wait(-1, allq[k:k + 2])
        qrd = {}
        if "A" in c.qreg:
            self.qwait[0] = w
        else:
            qrd[0] = self.q_reads(0, w, [-1] * 8)
        put([-1], 10 + c.W0)

        todo_pts = list(pts)
        state = {"gap": 0}

        def points_before(pos):
            while todo_pts and todo_pts[0]["gap"] < pos:
                p = todo_pts.pop(0)
                x = max(idx_end[it] for it in p["items"])
                put(list(range(state["gap"], p["gap"])) or [p["gap"] - 1], x + c.W)
                assert self.nxt >= x, f"loads for point {p['name']} blocked"
                lg = qrd.get(2, []) if p["name"] == c.tq else []
                w = wait(p["gap"], [o for it in p["items"] for o in ld[it]], lg)
                if p["bar"]:
                    bb = s.add(Op("s_barrier", "barrier", pin=p["gap"], cost=c.cbar))
                    s.order(w, bb)
                    passed[p["name"]] = bb
                    for it in p["items"]:
                        self.landed[it], self.land_gap[it] = bb, p["gap"]
                else:
                    blk = p["items"][0][1]
                    if "rd" in p and "ABC"[blk] not in c.qreg:
                        qrd[blk] = self.q_reads(blk, w, p["rd"])
                        self.qc_read = blk == 2
                    else:
                        self.qwait[blk] = w
                if c.sink and p["gap"] <= self.sink_end:
                    s.sinks[p["gap"]] = p["gap"] + (80 if p["name"] == "B" else 24)
                state["gap"] = p["gap"] + (0 if p["gap"] % 2 else 1)
                if not todo_pts or True:
                    pass

        self.sink_end = [p for p in pts if p["name"] == "B"][0]["gap"]
        firstqk = True
        for sg in self.seg:
            if sg[0] in ("qk", "qk2"):
                points_before(s.nm() + 0)
                if firstqk:
                    k_frag, pre = self.k_frag, list(self.pre_kfr)
                    self.k_frag = lambda t, x, j: pre[x] if x < len(pre) else k_frag(t, x, j)
                    self.qk(sg[1])
                    self.k_frag = k_frag
                    firstqk = False
                else:
                    self.qk(sg[1], sg[0] == "qk2")
            elif sg[0] == "sm":
                self.softmax(sg[1])
            elif sg[0] == "ls":
                points_before(s.nm() + 0)
                self.lsum(sg[1])
            elif sg[0] == "eh":
                self.epi_head(sg[1])
            elif sg[0] == "pv":
                points_before(s.nm() + 0)
                for g, ks, j in sg[1]:
                    self.pv_one(g, ks, j)
            elif sg[0] == "et":
                self.epi_tile(sg[1], sg[2])
        assert not todo_pts and self.nxt == len(chunks), (todo_pts, self.nxt, len(chunks))
        out = s.run(c.passes, c.spread)
        self.check()
        return out

    def check(self):
        bar_vm = bar_ds = -1
        content, reads = {}, {}
        for kind, tag, seq, vm_done, ds_done, g in self.s.events:
            if kind == "barrier":
                bar_vm, bar_ds = vm_done, ds_done
            elif tag[0] == "dma":
                for r in tag[1]:
                    if content.get(r, (None,))[0] != tag[2]:
                        assert all(x <= bar_ds for x in reads.get(r, [])), f"region {r} overwritten early by {tag[2]} in gap {g}"
                        reads[r] = []
                    content[r] = (tag[2], seq)
            else:
                for r in tag[1]:
                    assert content[r][0] == tag[2], f"region {r} holds {content[r][0]} when {tag[2]} is read in gap {g}"
                    assert content[r][1] <= (bar_vm if tag[3] else vm_done), f"{tag[2]} read before landing in gap {g}"
                    reads.setdefault(r, []).append(seq)

    def kernel(self):
        c = self.c
        k = c.name + "_kernel"
        self.plan()
        L = []
        A = L.append
        A("; GQA attention forward, one workgroup per (batch, q-head); generated by gen/gen3.py")
        A("; @launch grid=(256,1,1) block=(256,1,1) lds=163840")
        A('.amdgcn_target "amdgcn-amd-amdhsa--gfx950"')
        A(".text")
        A(f".globl {k}")
        A(".p2align 8")
        A(f".type {k},@function")
        A(f"{k}:")
        if c.stamps:
            A(f"s_memrealtime s[{S_STAMP}:{S_STAMP + 1}]")
        A(f"s_load_dwordx4 s[{S_KA}:{S_KA + 3}], s[0:1], 0")
        A(f"s_load_dwordx4 s[{S_KA + 4}:{S_KA + 7}], s[0:1], 16")
        A("s_cmp_ge_u32 s2, 256")
        A("s_cbranch_scc1 L_end")
        if c.pf:
            A("s_getpc_b64 s[96:97]")
            A("L_pc:")
            A("s_lshr_b32 s3, s2, 3")
            A("v_lshl_add_u32 v2, s3, 8, v0")
            A(f"v_lshlrev_b32 v2, {c.pfs}, v2")
            if c.pfs > 2:
                A("v_and_b32 v2, 0x7fff, v2")
            A("v_min_u32 v2, L_end-L_pc, v2")
            A("v_mov_b32 v3, 0")
            A("v_lshl_add_u64 v[2:3], v[2:3], 0, s[96:97]")
            A("global_load_dword v9, v[2:3], off")
            if c.pf2:
                A("s_and_b32 s98, s3, 1")
                A("s_lshl_b32 s98, s98, 10")
                A("s_and_b32 s3, s3, 6")
                A("s_lshl_b32 s3, s3, 12")
                A("s_add_u32 s98, s98, s3")
        A("s_and_b32 s3, s2, 7")
        A("s_lshr_b32 s88, s2, 3")
        A("s_lshl_b32 s3, s3, 5")
        A("s_add_u32 s3, s3, s88")
        A("s_lshr_b32 s88, s3, 1")
        A(f"s_mul_i32 s89, s3, {HEAD_BYTES}")
        A(f"s_mul_i32 s88, s88, {HEAD_BYTES}")
        A("v_lshrrev_b32 v1, 6, v0")
        A("v_and_b32 v2, 63, v0")
        A("v_lshrrev_b32 v3, 4, v2")
        A(f"v_readfirstlane_b32 s31, v1")
        A("v_and_b32 v4, 15, v2")
        A("v_and_b32 v5, 1, v1")
        A("v_lshl_add_u32 v5, v5, 3, v3")
        A("v_xor_b32 v5, v5, v4")
        A("v_lshl_add_u32 v6, v1, 3, v3")
        A("v_lshlrev_b32 v6, 8, v6")
        A(f"v_lshl_add_u32 v{V_KD}, v5, 4, v6")
        for i in range(1, 4):
            A(f"v_xor_b32 v{V_KD + i}, {64 * i}, v{V_KD}")
        A("v_lshl_or_b32 v5, v3, 1, v3")
        A("v_and_b32 v5, 5, v5")
        A("v_xor_b32 v5, v5, v4")
        A(f"v_lshl_add_u32 v{V_VD}, v5, 4, v6")
        A(f"v_xor_b32 v{V_VD + 1}, 128, v{V_VD}")
        for t in range(12):
            A(f"s_mov_b32 s{S_T + t}, {t * KT}")
        A(f"s_lshl_b32 s{S_WL}, s31, 11")
        A(f"s_lshl_b32 s{S_QM}, s31, 13")
        A(f"s_mul_i32 s{S_QS}, s31, 6144")
        for i in range(1, 6):
            A(f"s_add_u32 s{S_QS + i}, s{S_QS}, {(i // 2) * 32768 + (i % 2) * 4096}")
        A("s_cmp_lt_u32 s31, 2")
        A(f"s_cselect_b32 s{S_DELTA}, {(Q_REG[2][0] - Q_REG[1][0]) * KT}, 0")
        A(f"s_add_u32 s{S_QCM}, s{S_QM}, s{S_DELTA}")
        A(f"s_add_u32 s{S_QCM}, s{S_QCM}, {Q_REG[1][0] * KT}")
        A(f"s_mov_b32 s{S_64K}, 65536")
        if c.wb:
            if c.wbsel >= 0:
                A("s_lshr_b32 s3, s2, 3")
                A(f"s_xor_b32 s3, s3, {c.wbsel}")
                A("s_or_b32 s3, s3, s31")
            else:
                A("s_lshr_b32 s3, s2, 3")
                A(f"s_and_b32 s3, s3, {-c.wbsel - 1}")
                A("s_or_b32 s3, s3, s31")
            A("s_cmp_eq_u32 s3, 0")
            A("s_cselect_b32 s3, 1, 0")
        for r in (S_Q, S_K, S_V, S_O):
            A(f"s_mov_b32 s{r + 2}, {HEAD_BYTES}")
            A(f"s_mov_b32 s{r + 3}, 0x00020000")
        A(f"s_mov_b32 s{S_MODE}, 0")
        for b in range(3):
            A(f"v_mov_b32 v{V_MPRE[b]}, 0xff800000")
        A("v_cmp_gt_u32 vcc, 8, v4")
        A("v_mov_b32 v5, 0x3f803f80")
        A("s_nop 0")
        for i in range(4):
            A(f"v_cndmask_b32 v{V_ONE + i}, 0, v5, vcc")
            A(f"v_sub_u32 v{V_ONE + 4 + i}, v5, v{V_ONE + i}")
        A("v_lshlrev_b32 v7, 8, v4")
        A("v_lshl_add_u32 v5, v3, 4, v7")
        A(f"v_add_u32 v{V_QO}, s{S_QM}, v5")
        if c.stlin == 1:
            A("v_lshlrev_b32 v5, 4, v2")
            A(f"v_add_u32 v{V_QO}, s{S_QM}, v5")
        if c.stlin == 2:
            A("v_lshrrev_b32 v5, 3, v2")
            A("v_and_b32 v6, 7, v2")
            A("v_lshlrev_b32 v5, 8, v5")
            A("v_lshl_add_u32 v5, v6, 4, v5")
            A(f"v_add_u32 v{V_QO}, s{S_QM}, v5")
        A("v_xor_b32 v5, v3, v4")
        A(f"v_lshl_add_u32 v{V_KA}, v5, 4, v7")
        for i in range(1, 4):
            A(f"v_xor_b32 v{V_KA + i}, {64 * i}, v{V_KA}")
        for i in range(4):
            A(f"v_add_u32 v{V_KH + i}, s{S_64K}, v{V_KA + i}")
        A("v_lshrrev_b32 v5, 2, v2")
        A("v_and_b32 v6, 6, v5")
        A("v_and_b32 v8, 1, v5")
        A("v_lshl_or_b32 v6, v6, 1, v8")
        A("v_and_b32 v8, 2, v2")
        A("v_xor_b32 v6, v6, v8")
        A("v_lshlrev_b32 v5, 8, v5")
        A("v_lshl_add_u32 v5, v6, 4, v5")
        A("v_and_b32 v6, 1, v2")
        A("v_lshl_add_u32 v5, v6, 3, v5")
        A(f"v_add_u32 v{V_VA}, {VBASE}, v5")
        for j in range(1, 8):
            A(f"v_xor_b32 v{V_VA + j}, {64 * (j // 2) + 16 * (j % 2)}, v{V_VA}")
        A(f"s_mov_b32 s{S_C}, {f32(C_SCALE):#x}")
        A(f"s_mov_b32 s{S_NC}, {f32(-C_SCALE):#x}")
        A(f"s_mov_b32 s{S_THR}, {f32(c.thr):#x}")
        for b in range(3):
            A(f"s_mov_b32 s{S_ST2 + b}, {b * 32768 + 4096}")
        A("s_waitcnt lgkmcnt(0)")
        for r, p, off in ((S_K, S_KA + 2, 88), (S_Q, S_KA, 89), (S_V, S_KA + 4, 88), (S_O, S_KA + 6, 89)):
            A(f"s_add_u32 s{r}, s{p}, s{off}")
            A(f"s_addc_u32 s{r + 1}, s{p + 1}, 0")
        if c.stamps:
            A(f"s_memrealtime s[{S_STAMP + 2}:{S_STAMP + 3}]")
        A("L_start:")
        setup = [(f"s_mov_b64 s[{S_FAIL}:{S_FAIL + 1}], 0", "salu", [], [f"s{S_FAIL}"]),
                 (f"s_lshr_b32 s31, s{S_WL}, 4", "salu", [], ["s31", "scc"]),
                 ("s_and_b32 s31, s31, 128", "salu", ["s31"], ["s31", "scc"]),
                 (f"s_add_u32 s47, s{S_QM}, {Q_REG[0][0] * KT}", "salu", [], ["s47", "scc"])]
        for i in range(4):
            setup.append((f"v_xor_b32 v{V_QR + i}, s31, v{V_KA + i}", "valu", ["s31"], [f"v{V_QR + i}"]))
        for i in range(4):
            setup.append((f"v_add_u32 v{V_QR + i}, s47, v{V_QR + i}", "valu", ["s47", f"v{V_QR + i}"], [f"v{V_QR + i}"]))
        L += self.body(setup)
        ns = len(c.stamps)
        assert ns <= 12
        if c.stamps:
            A(f"s_memrealtime s[{S_STAMP + 4 + 2 * ns}:{S_STAMP + 5 + 2 * ns}]")
        A("s_nop 1")
        A(f"s_cmp_lg_u64 s[{S_FAIL}:{S_FAIL + 1}], 0")
        A("s_cselect_b32 s84, 1, 0")
        A(f"s_lshr_b32 s85, s{S_WL}, 9")
        A("v_mov_b32 v128, s84")
        A("v_mov_b32 v129, s85")
        A("v_mov_b32 v130, 0")
        A("s_barrier")
        A("ds_write_b32 v129, v128")
        A("s_waitcnt lgkmcnt(0)")
        A("s_barrier")
        A("ds_read_b128 v[132:135], v130")
        A("s_waitcnt lgkmcnt(0)")
        A("v_or_b32 v132, v132, v133")
        A("v_or3_b32 v132, v132, v134, v135")
        A("s_nop 0")
        A("v_readfirstlane_b32 s84, v132")
        A("s_nop 0")
        A(f"s_andn2_b32 s84, s84, s{S_MODE}")
        A("s_cbranch_scc1 L_fallback")
        if c.stamps:
            A("s_waitcnt vmcnt(0)")
            A(f"s_memrealtime s[{S_STAMP + 6 + 2 * ns}:{S_STAMP + 7 + 2 * ns}]")
            A(f"s_load_dwordx2 s[80:81], s[0:1], {40 if c.stamp_dst == 'ws' else 32}")
            A("s_waitcnt lgkmcnt(0)")
            if c.pad >= 0:
                A("L_pad:")
                A("s_memrealtime s[84:85]")
                A("s_waitcnt lgkmcnt(0)")
                A(f"s_sub_u32 s84, s84, s{S_STAMP + 2 * c.pad}")
                A("s_cmp_lt_u32 s84, 6000")
                A("s_cbranch_scc1 L_pad")
            A("s_mov_b32 s82, " + ("0x10000000" if c.stamp_dst == "ws" else "256"))
            A("s_mov_b32 s83, 0x00020000")
            A(f"s_lshr_b32 s85, s{S_WL}, 5")
            A("s_lshl_b32 s84, s2, 8")
            A("s_add_u32 s84, s84, s85")
            A("v_mov_b32 v129, s84")
            for i in range(ns + 4):
                A(f"v_mov_b32 v128, s{S_STAMP + 2 * i}")
                A(f"buffer_store_dword v128, v129, s[80:83], 0 offen offset:{4 * i} sc1")
        A("L_end:")
        A("s_endpgm")
        A("L_fallback:")
        A("s_waitcnt vmcnt(0)")
        A(f"v_and_b32 v140, 0x1fff, v{V_QO}")
        for b in range(3):
            for f in range(8):
                so = S_T + 4 * b if f < 4 else S_ST2 + b
                A(f"buffer_load_dwordx4 v[{64 + 4 * f}:{67 + 4 * f}], v{V_QO}, s[{S_Q}:{S_Q + 3}], s{so} offen offset:{64 * (f % 4)}")
            for h in range(2):
                A(f"v_mov_b32 v{8 + h}, 0xff800000")
            A("s_mov_b32 s84, 0")
            A(f"L_fb{b}:")
            for f in range(4):
                A(f"buffer_load_dwordx4 v[{96 + 4 * f}:{99 + 4 * f}], v140, s[{S_K}:{S_K + 3}], s84 offen offset:{64 * f}")
            A("s_waitcnt vmcnt(0)")
            for f in range(8):
                h = f // 4
                A(f"{MF} v[{4 * h}:{4 * h + 3}], v[{96 + 4 * (f % 4)}:{99 + 4 * (f % 4)}], v[{64 + 4 * f}:{67 + 4 * f}], {'0' if f % 4 == 0 else f'v[{4 * h}:{4 * h + 3}]'}")
            A("s_nop 15")
            for i in range(4):
                A(f"v_max3_f32 v{8 + i // 2}, v{8 + i // 2}, v{2 * i}, v{2 * i + 1}")
            A("s_add_u32 s84, s84, 4096")
            A(f"s_cmp_lt_u32 s84, {12 * KT}")
            A(f"s_cbranch_scc1 L_fb{b}")
            A("s_nop 1")
            A("v_permlane32_swap_b32 v8, v9")
            A("v_max_f32 v8, v8, v9")
            A("v_mov_b32 v9, v8")
            A("s_nop 1")
            A("v_permlane16_swap_b32 v8, v9")
            A(f"v_max_f32 v{V_MPRE[b]}, v8, v9")
        if c.pf2:
            for i in (2, 3):
                A(f"v_xor_b32 v{V_KD + i}, {64 * i}, v{V_KD}")
        A(f"s_mov_b32 s{S_MODE}, 1")
        A("s_barrier")
        A("s_branch L_start")
        if c.cyc:
            L = [x.replace("s_memrealtime", "s_memtime") for x in L]
        body = "\n".join(x if x.endswith(":") or x.startswith((";", ".")) else "    " + x for x in L)
        body += f"""
.section .rodata,"a"
.p2align 6
.amdhsa_kernel {k}
  .amdhsa_next_free_vgpr 512
  .amdhsa_next_free_sgpr {100 if c.pf else 96}
  .amdhsa_accum_offset 256
  .amdhsa_group_segment_fixed_size 0
  .amdhsa_kernarg_size 48
  .amdhsa_user_sgpr_count 2
  .amdhsa_user_sgpr_kernarg_segment_ptr 1
  .amdhsa_system_sgpr_workgroup_id_x 1
  .amdhsa_float_denorm_mode_32 3
.end_amdhsa_kernel
"""
        return body


def parse(args):
    kw = {}
    for a in args:
        k, v = a.split("=", 1)
        d = getattr(Cfg, k)
        if isinstance(d, tuple):
            v = tuple(int(x) for x in v.split(",") if x)
        elif isinstance(d, (int, float)):
            v = type(d)(v)
        kw[k] = v
    return kw


if __name__ == "__main__":
    out = sys.argv[1]
    g = Gen(Cfg(**parse(sys.argv[2:])))
    txt = g.kernel()
    open(out, "w").write(txt)
    gc = g.s.gapcost
    print(out, "mfma", g.s.nm(), g.s.stats, "pre", gc[0], file=sys.stderr)
    ch = "0123456789abcdefghijklmnopqrstuvwxyz"
    for i in range(1, len(gc), 128):
        print(f"{i - 1:4d} " + "".join(ch[min(35, x)] for x in gc[i:i + 128]), file=sys.stderr)
    print("stores", sorted(x for x in g.st_pin.values() if x is not None), file=sys.stderr)
```

```python
import struct
import sys
from sched2 import Op, Sched, R, rng

NAME = "standalone__gqa_softmax__near_ridge"
HEAD_BYTES = 384 * 256
KT = 8192
VBASE = 12 * KT


def f32(x):
    return struct.unpack("<I", struct.pack("<f", x))[0]


C_SCALE = 1.4426950408889634 * (128 ** -0.5)

S_Q, S_K, S_V, S_O = 4, 8, 12, 16
S_C, S_NC, S_WL, S_MODE, S_FAIL, S_THR = 20, 21, 22, 23, 24, 26
S_QM, S_QCM, S_DELTA, S_64K = 27, 28, 29, 30
S_T = 32
S_ST2 = 44
S_STAMP = 48
S_KA = 80
S_QS = 90
V_O = {"X": 0, "Y": 64}
V_S = {"X": 128, "Y": 160}
V_P = {"X": 192, "Y": 200}
V_KA, V_KH, V_QR, V_VA = 208, 216, 224, 232
V_KD, V_VD, V_OO, V_QO = 236, 240, 241, 242
V_L = {"X": 243, "Y": 245}
V_MC = {"X": 247, "Y": 248}
V_MPRE = {0: 247, 1: 248, 2: 249}
V_T = 250
V_R = {"X": 252, "Y": 253}
A_VREG = 0
A_Q = {0: 128, 1: 160, 2: 192}
A_RING, NRING = 224, 8
STREAM = {0: "X", 1: "Y", 2: "X"}
NRES = 4
Q_REG = {0: [16, 17, 18, 19], 1: [8, 9, 10, 11], 2: [13, 14, 10, 11]}


class Cfg:
    a = 2
    b = 2
    split = 1
    D = 6
    Dj = 6
    W = 12
    W0 = 12
    tq = 7
    qreg = ""
    defer = (2, 2, 2, 2)
    cdma = 1
    cst = 5
    cbar = 2
    stsp = 8
    dmasp = 2
    sink = 1
    passes = 6
    spread = 12
    ld = ""
    qf = ""
    st = "sc1"
    stamps = ()
    gst = ()
    stamp_dst = "ws"
    thr = 2.0 ** 24
    budget = 6
    name = NAME
    pad = -1
    cyc = 0
    dsame = 0
    pf = 0

    def __init__(self, **kw):
        for k, v in kw.items():
            assert hasattr(self, k), k
            setattr(self, k, v)


def fl(x):
    return (" " + x.replace("+", " ")) if x else ""


class Gen:
    def __init__(self, cfg):
        self.c = cfg
        self.s = Sched(cfg.budget)
        self.ring = 0

    def plan(self):
        c = self.c
        a, b = c.a, c.b
        G = [[(0, t)] for t in range(a)]
        G += [[(0, t), (1, t)] for t in range(a, 12)]
        G += [[(1, t)] for t in range(b)]
        G += [[(1, t), (2, t)] for t in range(b, a)]
        G += [[(2, t)] for t in list(range(b)) + list(range(a, 12))]
        self.G = G
        self.ucount, cnt = {}, {0: 0, 1: 0, 2: 0}
        for g in G:
            for u in g:
                self.ucount[u] = cnt[u[0]]
                cnt[u[0]] += 1
        n = len(G)
        self.split = c.split and 1 <= a <= NRES
        seg = [("qk", G[0])]
        late = {j: [] for j in range(4)}
        for i in range(n):
            sp = self.split and i + 1 == a
            if i + 1 < n:
                seg.append(("qk", G[i + 1][:1] if sp else G[i + 1]))
            if not (self.split and i == a):
                seg.append(("sm", G[i]))
            else:
                seg.append(("sm", G[i][1:]))
            done = [blk for blk, t in G[i] if self.ucount[(blk, t)] == 11]
            for blk in done:
                seg.append(("eh", blk))
            now = [j for j in range(4) if n - i > c.defer[j]]
            for j in range(4):
                if j not in now:
                    assert len(G[i]) == 1 and G[i][0][0] == 2
                    late[j].append(G[i])
            seg.append(("pv", [(G[i], ks, j) for ks in range(2) for j in now]))
            for blk in done:
                if blk != 2:
                    for j in range(4):
                        seg.append(("et", blk, j))
            if sp:
                seg.append(("sm", G[i + 1][:1]))
                seg.append(("qk2", G[i + 1][1:]))
        for j in range(4):
            seg.append(("pv", [(g, ks, j) for g in late[j] for ks in range(2)]))
            seg.append(("et", 2, j))
        self.seg = seg
        pos = 0
        self.qk_start, self.pv_start, self.o_first, self.o_last = {}, {}, {}, {}
        for sg in seg:
            if sg[0] in ("qk", "qk2"):
                for u in sg[1]:
                    self.qk_start[u] = pos
                pos += 8 * len(sg[1])
            elif sg[0] == "pv":
                for g, ks, j in sg[1]:
                    for u in g:
                        self.pv_start.setdefault(u, pos)
                        self.o_first.setdefault((u[0], j), pos)
                        self.o_last[(u[0], j)] = pos
                        pos += 1
        self.nm = pos
        if c.gst:
            st = [self.qk_start[G[i][-1]] for i in c.gst]
            assert len(set(st)) == len(st)
            c.stamps = tuple(st)
        self.pb = {}
        pool = [V_P["X"], V_P["Y"]] + [V_S["Y"] + 8 * k for k in range(4)] + [V_O["Y"] + 8 * k for k in range(8)]
        nd = max(c.defer)
        prev = None
        for i, g in enumerate(G):
            if len(g) == 2:
                for u in g:
                    self.pb[u] = V_P[STREAM[u[0]]]
                prev = None
            elif n - i <= nd:
                k = i - (n - nd)
                first = 1 if prev == V_P["X"] else 0
                if k == 0:
                    self.pool_order = [pool[first], pool[1 - first]] + pool[2:]
                    if nd > 2:
                        self.pool_order = pool[2:nd] + self.pool_order[:2]
                self.pb[g[0]] = self.pool_order[k]
            else:
                u = g[0]
                own, other = V_P[STREAM[u[0]]], V_P["Y" if STREAM[u[0]] == "X" else "X"]
                if i < a:
                    p = other if (a - i) % 2 == 1 else own
                else:
                    p = other if prev == own else own
                self.pb[u] = prev = p
        self.st_pin = {}
        last = -100
        for blk in range(3):
            keys = [(j, h) for j in range(4) for h in range(2)]
            lo = {k: self.o_last[(blk, k[0])] + 6 + 2 * k[1] for k in keys}
            if blk == 0:
                hi = {k: self.o_first[(2, k[0])] - 1 for k in keys}
                t0, t1 = lo[keys[0]], hi[keys[-1]]
                sp = min(c.stsp, (t1 - t0) / 7)
                p = {k: min(hi[k], max(lo[k], round(t0 + sp * x))) for x, k in enumerate(keys)}
            elif blk == 1:
                p = {}
                for k in keys:
                    last = p[k] = max(lo[k], last + c.stsp)
            else:
                p = {k: (lo[k] if lo[k] < self.nm - 1 else None) for k in keys}
            for k in keys:
                self.st_pin[(blk,) + k] = p[k]
            last = max(x for x in p.values() if x is not None)

    def vreg(self, t):
        return 12 + t % 8

    def item_ops(self, it):
        c = self.c
        if it[0] == "Q":
            blk = it[1]
            if "ABC"[blk] in c.qreg:
                so = "0" if blk == 0 else f"s{S_T + 4 * blk}"
                return [(None, [Op(f"buffer_load_dwordx4 {rng('a', A_Q[blk] + 4 * s, 4)}, v{V_QO}, s[{S_Q}:{S_Q + 3}], {so} offen offset:{32 * s}{fl(c.qf)}",
                                   "vld", [f"v{V_QO}"], R("a", A_Q[blk] + 4 * s, 4), cost=c.cdma) for s in range(8)])]
            res = []
            for half in range(2):
                base, imm = (S_QCM, 0) if blk == 2 else (S_QM, Q_REG[blk][0] * KT)
                m0 = Op(f"s_add_u32 m0, s{base}, {imm + 4096 * half}", "salu", [f"s{base}"], ["m0", "scc"])
                ld = [Op(f"buffer_load_dwordx4 v{V_KD + i}, s[{S_Q}:{S_Q + 3}], s{S_QS + 2 * blk + half} offen offset:{1024 * i}{fl(c.qf)} lds",
                         "vld", [f"v{V_KD + i}", "m0"], [], cost=c.cdma, tag=("dma", tuple(Q_REG[blk]), it)) for i in range(4)]
                res.append((m0, ld))
            return res
        which, t = it
        if which == "K":
            reg, srd, vo = t, S_K, (V_KD, V_KD + 1)
        else:
            reg, srd, vo = self.vreg(t), S_V, (V_VD, V_VD)
        m0 = Op(f"s_add_u32 m0, s{S_WL}, {reg * KT}", "salu", [f"s{S_WL}"], ["m0", "scc"])
        ld = [Op(f"buffer_load_dwordx4 v{vo[j]}, s[{srd}:{srd + 3}], s{S_T + (0 if c.dsame else t)} offen offset:{1024 * j}{fl(c.ld)} lds",
                 "vld", [f"v{vo[j]}", "m0"], [], cost=c.cdma, tag=("dma", (reg,), it)) for j in range(2)]
        return [(m0, ld)]

    def ring_slot(self):
        r = A_RING + 4 * self.ring
        self.ring = (self.ring + 1) % NRING
        return r

    def frag_pin(self, joint):
        return max(-1, self.s.nm() - (self.c.Dj if joint else self.c.D))

    def k_frag(self, t, s, joint):
        r = self.ring_slot()
        base = V_KH if t >= 8 else V_KA
        o = self.s.add(Op(f"ds_read_b128 {rng('a', r, 4)}, v{base + s} offset:{(t % 8) * KT}", "ds",
                          [f"v{base + s}"], R("a", r, 4), pin=max(self.frag_pin(joint), self.land_gap[("K", t)]),
                          tag=("rd", (t,), ("K", t), True)))
        self.s.order(self.landed[("K", t)], o)
        return r

    def v_frag(self, t, ks, j, first_pass, joint):
        res = t < NRES
        r = A_VREG + 32 * t + 16 * ks + 4 * j if res else None
        if res and not first_pass:
            return r
        if not res:
            r = self.ring_slot()
        for jj in range(2):
            off = self.vreg(t) * KT - VBASE + ks * 4096 + jj * 2048
            o = self.s.add(Op(f"ds_read_b64_tr_b16 {rng('a', r + 2 * jj, 2)}, v{V_VA + j} offset:{off}", "ds",
                              [f"v{V_VA + j}"], R("a", r + 2 * jj, 2), pin=max(self.frag_pin(joint), self.land_gap[("V", t)]),
                              tag=("rd", (self.vreg(t),), ("V", t), True)))
            self.s.order(self.landed[("V", t)], o)
        return r

    def q_reads(self, blk, wait, gaps):
        res = []
        for s in range(8):
            o = self.s.add(Op(f"ds_read_b128 {rng('a', A_Q[blk] + 4 * s, 4)}, v{V_QR + s}", "ds", [f"v{V_QR + s}"],
                              R("a", A_Q[blk] + 4 * s, 4), pin=gaps[s], tag=("rd", tuple(Q_REG[blk]), ("Q", blk), False)))
            self.s.order(wait, o)
            res.append(o)
        nxt = {0: f"v_subrev_u32 v{{0}}, s{S_64K}, v{{0}}", 1: f"v_add_u32 v{{0}}, s{S_DELTA}, v{{0}}"}.get(blk)
        if nxt and any("ABC"[k] not in self.c.qreg for k in range(blk + 1, 3)):
            for s in range(8):
                self.s.add(Op(nxt.format(V_QR + s), "valu", [f"v{V_QR + s}"], [f"v{V_QR + s}"]))
        return res

    def sbuf(self, blk, t):
        return V_S[STREAM[blk]] + 16 * (self.ucount[(blk, t)] % 2)

    def qk(self, grp, reuse=False):
        t = grp[0][1]
        if not reuse:
            self.kfr = []
        for s in range(8):
            if not reuse:
                self.kfr.append(self.k_frag(t, s, len(grp) > 1))
            a = self.kfr[s]
            for blk, _ in grp:
                d = self.sbuf(blk, t)
                q = A_Q[blk] + 4 * s
                cs = "0" if s == 0 else rng("v", d, 16)
                srcc = [] if s == 0 else R("v", d, 16)
                m = self.s.add(Op(f"v_mfma_f32_32x32x16_bf16 {rng('v', d, 16)}, {rng('a', a, 4)}, {rng('a', q, 4)}, {cs}",
                                  "mfma", R("a", a, 4) + R("a", q, 4) + srcc, R("v", d, 16), srcc=srcc))
                if blk in self.qwait and s == 0:
                    self.s.order(self.qwait[blk], m)
                self.hook(m)

    def pv_one(self, units, ks, j):
        t = units[0][1]
        a = self.v_frag(t, ks, j, units[0][0] == 0, len(units) > 1)
        for blk, _ in units:
            d = V_O[STREAM[blk]] + 16 * j
            p = self.pb[(blk, t)] + 4 * ks
            first = self.s.nm() == self.o_first[(blk, j)]
            cs = "0" if first else rng("v", d, 16)
            srcc = [] if first else R("v", d, 16)
            m = self.s.add(Op(f"v_mfma_f32_32x32x16_bf16 {rng('v', d, 16)}, {rng('a', a, 4)}, {rng('v', p, 4)}, {cs}",
                              "mfma", R("a", a, 4) + R("v", p, 4) + srcc, R("v", d, 16), srcc=srcc))
            self.hook(m)

    def softmax(self, grp):
        add = self.s.add
        for blk, t in grp:
            st = STREAM[blk]
            sb, mc = self.sbuf(blk, t), V_MC[st]
            if self.ucount[(blk, t)] == 0:
                sv = [f"v{sb + i}" for i in range(16)]
                t0, t1, mp = f"v{V_T}", f"v{V_T + 1}", f"v{V_MPRE[blk]}"
                add(Op(f"v_max3_f32 {t0}, {sv[0]}, {sv[1]}, {sv[2]}", "valu", sv[0:3], [t0]))
                add(Op(f"v_max3_f32 {t1}, {sv[3]}, {sv[4]}, {sv[5]}", "valu", sv[3:6], [t1]))
                for i in range(5):
                    tt = t0 if i % 2 == 0 else t1
                    add(Op(f"v_max3_f32 {tt}, {tt}, {sv[6 + 2 * i]}, {sv[7 + 2 * i]}", "valu", [tt, sv[6 + 2 * i], sv[7 + 2 * i]], [tt]))
                add(Op(f"v_max3_f32 {t0}, {t0}, {t1}, {mp}", "valu", [t0, t1, mp], [t0]))
                add(Op(f"v_mov_b32 {t1}, {t0}", "valu", [t0], [t1]))
                add(Op(f"v_permlane32_swap_b32 {t0}, {t1}", "perm", [t0, t1], [t0, t1], cost=2))
                add(Op(f"v_max_f32 {t0}, {t0}, {t1}", "valu", [t0, t1], [t0]))
                add(Op(f"v_mul_f32 v{mc}, s{S_NC}, {t0}", "valu", [t0], [f"v{mc}"]))
        for ks in range(2):
            for i in range(4):
                for blk, t in grp:
                    st = STREAM[blk]
                    sb, l, mc = self.sbuf(blk, t), V_L[st], V_MC[st]
                    first = self.ucount[(blk, t)] == 0 and ks == 0 and i == 0
                    e = [f"v{sb + 8 * ks + 2 * i}", f"v{sb + 8 * ks + 2 * i + 1}"]
                    for x in e:
                        add(Op(f"v_fma_f32 {x}, {x}, s{S_C}, v{mc}", "valu", [x, f"v{mc}"], [x]))
                    for x in e:
                        add(Op(f"v_exp_f32 {x}, {x}", "trans", [x], [x], cost=2))
                    pr = f"v{self.pb[(blk, t)] + 4 * ks + i}"
                    add(Op(f"v_cvt_pk_bf16_f32 {pr}, {e[0]}, {e[1]}", "valu", e, [pr]))
                    for k, x in enumerate(e):
                        if first:
                            add(Op(f"v_mov_b32 v{l + k}, {x}", "valu", [x], [f"v{l + k}"]))
                        else:
                            add(Op(f"v_add_f32 v{l + k}, v{l + k}, {x}", "valu", [x, f"v{l + k}"], [f"v{l + k}"]))

    def epi_head(self, blk):
        add = self.s.add
        st = STREAM[blk]
        l = V_L[st]
        a, b, r = f"v{l}", f"v{l + 1}", f"v{V_R[st]}"
        add(Op(f"v_add_f32 {a}, {a}, {b}", "valu", [a, b], [a]))
        add(Op(f"v_mov_b32 {b}, {a}", "valu", [a], [b]))
        add(Op(f"v_permlane32_swap_b32 {a}, {b}", "perm", [a, b], [a, b], cost=2))
        add(Op(f"v_add_f32 {a}, {a}, {b}", "valu", [a, b], [a]))
        add(Op(f"v_rcp_f32 {r}, {a}", "trans", [a], [r], cost=2))
        due = self.o_last[(blk, 3)] + 4
        add(Op(f"v_cmp_nge_f32 vcc, s{S_THR}, {a}", "valu", [a], ["vcc"], due=due))
        add(Op(f"s_or_b64 s[{S_FAIL}:{S_FAIL + 1}], s[{S_FAIL}:{S_FAIL + 1}], vcc", "salu2", ["vcc", f"s{S_FAIL}"], [f"s{S_FAIL}", "scc"], due=due + 1))

    def epi_tile(self, blk, j):
        add = self.s.add
        st = STREAM[blk]
        o, r = V_O[st] + 16 * j, f"v{V_R[st]}"
        for i in range(8):
            x, y = f"v{o + 2 * i}", f"v{o + 2 * i + 1}"
            add(Op(f"v_mul_f32 {x}, {r}, {x}", "valu", [x, r], [x]))
            add(Op(f"v_mul_f32 {y}, {r}, {y}", "valu", [y, r], [y]))
            add(Op(f"v_cvt_pk_bf16_f32 v{o + i}, {x}, {y}", "valu", [x, y], [f"v{o + i}"]))
        for i in range(4):
            x, y = f"v{o + i}", f"v{o + 4 + i}"
            add(Op(f"v_permlane16_swap_b32 {x}, {y}", "perm", [x, y], [x, y], cost=2))
        for h in range(2):
            so = (f"s{S_T + 4 * blk}" if blk else "0") if h == 0 else f"s{S_ST2 + blk}"
            add(Op(f"buffer_store_dwordx4 {rng('v', o + 4 * h, 4)}, v{V_OO}, s[{S_O}:{S_O + 3}], {so} offen offset:{64 * j}{fl(self.c.st)}",
                   "vst", R("v", o + 4 * h, 4) + [f"v{V_OO}"], [], cost=self.c.cst, pin=self.st_pin[(blk, j, h)]))

    def hook(self, m):
        if m.mi in self.c.stamps:
            k = list(self.c.stamps).index(m.mi)
            self.s.add(Op(f"s_memrealtime s[{S_STAMP + 4 + 2 * k}:{S_STAMP + 5 + 2 * k}]", "salu", [], [], pin=m.mi))

    def load_plan(self):
        c, a, G = self.c, self.c.a, self.G
        joint = lambda t: t >= a
        dk = lambda t: c.Dj if joint(t) and not (self.split and t == a) else c.D
        pts = []
        for t in range(12):
            its = ([("K", t + 1)] if t < 11 else []) + [("V", t)]
            if t < 11:
                gap = self.qk_start[(0, t + 1)] - dk(t + 1) - 1
            else:
                gap = self.pv_start[(0, t)] - (c.Dj if joint(t) else c.D) - 1
            if not self.split and t == a - 1 and t < 11:
                pts.append(dict(gap=gap, items=its[:1], bar=True, name=t - 0.5))
                gap = self.pv_start[(0, t)] - c.D - 1
                its = its[1:]
            pts.append(dict(gap=gap, items=its, bar=True, name=t))
        fb = min((u for u in self.qk_start if u[0] == 1), key=lambda u: self.qk_start[u])
        fc = min((u for u in self.qk_start if u[0] == 2), key=lambda u: self.qk_start[u])
        gb = self.qk_start[fb] - 1
        pts.append(dict(gap=gb, items=[("Q", 1)], bar=False, name="B", rd=[gb] * 8))
        if "C" in c.qreg:
            gc = self.qk_start[fc] - 1
            pts.append(dict(gap=gc, items=[("Q", 2)], bar=False, name="C"))
        else:
            gs = [p for p in pts if p["name"] == c.tq][0]["gap"]
            gc = gs - 12
            gc -= gc % 2 == 0
            pts.append(dict(gap=gc, items=[("Q", 2)], bar=False, name="C", rd=[gc + 1 + k for k in range(8)]))
        pts.sort(key=lambda p: p["gap"])
        order = [("K", 0), ("Q", 0)]
        for t in range(12):
            if t < 11:
                order.append(("K", t + 1))
            if t == a - 1 and not self.split:
                order.append(("Q", 1))
            order.append(("V", t))
            if t == a - 1 and self.split:
                order.append(("Q", 1))
            if t == c.tq and "C" not in c.qreg:
                order.append(("Q", 2))
        if a == 0:
            order.insert(2, ("Q", 1))
        if "C" in c.qreg:
            order.append(("Q", 2))
        after = {}
        for t in range(4, 8):
            after[("V", t)] = 1
        if "B" not in c.qreg:
            for t in range(8, 12):
                after[("K", t)] = a + 1
        for t in range(8, 12):
            after[("V", t)] = t - 8 + 2
        if "C" not in c.qreg:
            after[("Q", 2)] = max(4, a + 1)
            for it in (("K", 10), ("K", 11), ("V", 9), ("V", 10)):
                after[it] = c.tq
        return pts, order, after

    def body(self, setup):
        c, s = self.c, self.s
        pts, order, after = self.load_plan()
        self.landed, self.land_gap, self.qwait = {}, {}, {}
        chunks, ld, idx_end = [], {}, {}
        n = 0
        for it in order:
            ld[it] = []
            for m0, l in self.item_ops(it):
                for k, o in enumerate(l):
                    chunks.append([it, m0 if k == 0 else None, o])
                    ld[it].append(o)
                    n += 1
            idx_end[it] = n
        self.nxt = 0
        passed = {}

        def put(gaps, upto):
            todo = []
            k = self.nxt
            while k < min(upto, len(chunks)):
                it = chunks[k][0]
                if it in after and after[it] not in passed:
                    break
                todo.append(chunks[k])
                k += 1
            while k < len(chunks) and chunks[k][1] is None and todo and chunks[k][0] == todo[-1][0]:
                todo.append(chunks[k])
                k += 1
            self.nxt = k
            if not todo:
                return
            g2 = [g for g in gaps[1:] if g % 2 == 0][::max(1, c.dmasp // 2)] if gaps[0] >= 0 else gaps
            if len(g2) < len(todo):
                g2 = [g for g in gaps[1:] if g % 2 == 0]
            if len(g2) < len(todo):
                g2 = gaps[1:] or gaps
            x = len(g2) / len(todo)
            for i, (it, m0, o) in enumerate(todo):
                g = g2[i] if x >= 1 else g2[int(i * x)]
                if m0 is not None:
                    m0.pin = max(gaps[0], g - 1)
                    s.add(m0)
                    if it in after:
                        s.order(passed[after[it]], m0)
                o.pin = g
                s.add(o)

        def wait(gap, ops, lg=()):
            w = Op("", "wait", pin=gap)
            w.vm_targets = list(ops)
            w.lgkm_targets = list(lg)
            s.add(w)
            for o in list(ops) + list(lg):
                s.order(o, w)
            return w

        put([-1], c.W0)
        for text, kind, rd, wr in setup:
            s.add(Op(text, kind, rd, wr, pin=-1))
        allq = [ch[2] for ch in chunks]
        w = wait(-1, ld[("K", 0)])
        bar = s.add(Op("s_barrier", "barrier", pin=-1))
        s.order(w, bar)
        self.landed[("K", 0)], self.land_gap[("K", 0)] = bar, -1
        first = True
        for k in range(2, 10, 2):
            put([-1], k + c.W0)
            if first:
                self.pre_kfr = [self.k_frag(0, x, False) for x in range(c.D)]
                first = False
            w = wait(-1, allq[k:k + 2])
        qrd = {}
        if "A" in c.qreg:
            self.qwait[0] = w
        else:
            qrd[0] = self.q_reads(0, w, [-1] * 8)
        put([-1], 10 + c.W0)

        todo_pts = list(pts)
        state = {"gap": 0}

        def points_before(pos):
            while todo_pts and todo_pts[0]["gap"] < pos:
                p = todo_pts.pop(0)
                x = max(idx_end[it] for it in p["items"])
                put(list(range(state["gap"], p["gap"])) or [p["gap"] - 1], x + c.W)
                assert self.nxt >= x, f"loads for point {p['name']} blocked"
                lg = qrd.get(2, []) if p["name"] == c.tq else []
                w = wait(p["gap"], [o for it in p["items"] for o in ld[it]], lg)
                if p["bar"]:
                    bb = s.add(Op("s_barrier", "barrier", pin=p["gap"], cost=c.cbar))
                    s.order(w, bb)
                    passed[p["name"]] = bb
                    for it in p["items"]:
                        self.landed[it], self.land_gap[it] = bb, p["gap"]
                else:
                    blk = p["items"][0][1]
                    if "rd" in p and "ABC"[blk] not in c.qreg:
                        qrd[blk] = self.q_reads(blk, w, p["rd"])
                    else:
                        self.qwait[blk] = w
                if c.sink and p["gap"] <= self.sink_end:
                    s.sinks[p["gap"]] = p["gap"] + (40 if p["name"] == "B" else 12)
                state["gap"] = p["gap"] + (0 if p["gap"] % 2 else 1)
                if not todo_pts or True:
                    pass

        self.sink_end = [p for p in pts if p["name"] == "B"][0]["gap"]
        firstqk = True
        for sg in self.seg:
            if sg[0] in ("qk", "qk2"):
                points_before(s.nm() + 0)
                if firstqk:
                    k_frag, pre = self.k_frag, list(self.pre_kfr)
                    self.k_frag = lambda t, x, j: pre[x] if x < len(pre) else k_frag(t, x, j)
                    self.qk(sg[1])
                    self.k_frag = k_frag
                    firstqk = False
                else:
                    self.qk(sg[1], sg[0] == "qk2")
            elif sg[0] == "sm":
                self.softmax(sg[1])
            elif sg[0] == "eh":
                self.epi_head(sg[1])
            elif sg[0] == "pv":
                points_before(s.nm() + 0)
                for g, ks, j in sg[1]:
                    self.pv_one(g, ks, j)
            elif sg[0] == "et":
                self.epi_tile(sg[1], sg[2])
        assert not todo_pts and self.nxt == len(chunks), (todo_pts, self.nxt, len(chunks))
        out = s.run(c.passes, c.spread)
        self.check()
        return out

    def check(self):
        bar_vm = bar_ds = -1
        content, reads = {}, {}
        for kind, tag, seq, vm_done, ds_done, g in self.s.events:
            if kind == "barrier":
                bar_vm, bar_ds = vm_done, ds_done
            elif tag[0] == "dma":
                for r in tag[1]:
                    if content.get(r, (None,))[0] != tag[2]:
                        assert all(x <= bar_ds for x in reads.get(r, [])), f"region {r} overwritten early by {tag[2]} in gap {g}"
                        reads[r] = []
                    content[r] = (tag[2], seq)
            else:
                for r in tag[1]:
                    assert content[r][0] == tag[2], f"region {r} holds {content[r][0]} when {tag[2]} is read in gap {g}"
                    assert content[r][1] <= (bar_vm if tag[3] else vm_done), f"{tag[2]} read before landing in gap {g}"
                    reads.setdefault(r, []).append(seq)

    def kernel(self):
        c = self.c
        k = c.name + "_kernel"
        self.plan()
        L = []
        A = L.append
        A("; GQA attention forward, one workgroup per (batch, q-head); generated by gen/gen2.py")
        A("; @launch grid=(256,1,1) block=(256,1,1) lds=163840")
        A('.amdgcn_target "amdgcn-amd-amdhsa--gfx950"')
        A(".text")
        A(f".globl {k}")
        A(".p2align 8")
        A(f".type {k},@function")
        A(f"{k}:")
        if c.stamps:
            A(f"s_memrealtime s[{S_STAMP}:{S_STAMP + 1}]")
        A(f"s_load_dwordx4 s[{S_KA}:{S_KA + 3}], s[0:1], 0")
        A(f"s_load_dwordx4 s[{S_KA + 4}:{S_KA + 7}], s[0:1], 16")
        A("s_cmp_ge_u32 s2, 256")
        A("s_cbranch_scc1 L_end")
        if c.pf:
            A("s_getpc_b64 s[96:97]")
            A("L_pc:")
            A("s_lshr_b32 s3, s2, 3")
            A("v_lshl_add_u32 v2, s3, 8, v0")
            A("v_lshlrev_b32 v2, 2, v2")
            A("v_min_u32 v2, L_end-L_pc, v2")
            A("v_mov_b32 v3, 0")
            A("v_lshl_add_u64 v[2:3], v[2:3], 0, s[96:97]")
            A("global_load_dword v30, v[2:3], off")
        A("s_and_b32 s3, s2, 7")
        A("s_lshr_b32 s88, s2, 3")
        A("s_lshl_b32 s3, s3, 5")
        A("s_add_u32 s3, s3, s88")
        A("s_lshr_b32 s88, s3, 1")
        A(f"s_mul_i32 s89, s3, {HEAD_BYTES}")
        A(f"s_mul_i32 s88, s88, {HEAD_BYTES}")
        A("v_lshrrev_b32 v1, 6, v0")
        A("v_and_b32 v2, 63, v0")
        A("v_lshrrev_b32 v3, 4, v2")
        A(f"v_readfirstlane_b32 s31, v1")
        A("v_and_b32 v4, 15, v2")
        A("v_and_b32 v5, 1, v1")
        A("v_lshl_add_u32 v5, v5, 3, v3")
        A("v_xor_b32 v5, v5, v4")
        A("v_lshl_add_u32 v6, v1, 3, v3")
        A("v_lshlrev_b32 v6, 8, v6")
        A(f"v_lshl_add_u32 v{V_KD}, v5, 4, v6")
        for i in range(1, 4):
            A(f"v_xor_b32 v{V_KD + i}, {64 * i}, v{V_KD}")
        A("v_lshlrev_b32 v5, 2, v3")
        A("v_xor_b32 v5, v5, v4")
        A(f"v_lshl_add_u32 v{V_VD}, v5, 4, v6")
        for t in range(12):
            A(f"s_mov_b32 s{S_T + t}, {t * KT}")
        A(f"s_lshl_b32 s{S_WL}, s31, 11")
        A(f"s_lshl_b32 s{S_QM}, s31, 13")
        A(f"s_mul_i32 s{S_QS}, s31, 6144")
        for i in range(1, 6):
            A(f"s_add_u32 s{S_QS + i}, s{S_QS}, {(i // 2) * 32768 + (i % 2) * 4096}")
        A("s_cmp_lt_u32 s31, 2")
        A(f"s_cselect_b32 s{S_DELTA}, {(Q_REG[2][0] - Q_REG[1][0]) * KT}, 0")
        A(f"s_add_u32 s{S_QCM}, s{S_QM}, s{S_DELTA}")
        A(f"s_add_u32 s{S_QCM}, s{S_QCM}, {Q_REG[1][0] * KT}")
        A(f"s_mov_b32 s{S_64K}, 65536")
        for r in (S_Q, S_K, S_V, S_O):
            A(f"s_mov_b32 s{r + 2}, {HEAD_BYTES}")
            A(f"s_mov_b32 s{r + 3}, 0x00020000")
        A(f"s_mov_b32 s{S_MODE}, 0")
        for b in range(3):
            A(f"v_mov_b32 v{V_MPRE[b]}, 0xff800000")
        A("v_and_b32 v7, 31, v2")
        A("v_lshrrev_b32 v8, 5, v2")
        A("v_lshlrev_b32 v5, 8, v7")
        A("v_lshl_add_u32 v5, v8, 4, v5")
        A(f"v_add_u32 v{V_QO}, s{S_QM}, v5")
        A("v_lshlrev_b32 v5, 8, v4")
        A("v_lshl_add_u32 v5, v3, 4, v5")
        A(f"v_add_u32 v{V_OO}, s{S_QM}, v5")
        A("v_xor_b32 v5, v8, v4")
        A("v_lshlrev_b32 v5, 4, v5")
        A(f"v_lshl_add_u32 v{V_KA}, v7, 8, v5")
        for i in range(1, 8):
            A(f"v_xor_b32 v{V_KA + i}, {32 * i}, v{V_KA}")
        for i in range(8):
            A(f"v_add_u32 v{V_KH + i}, s{S_64K}, v{V_KA + i}")
        A("v_lshrrev_b32 v5, 2, v4")
        A("v_lshl_add_u32 v6, v8, 2, v5")
        A("v_lshlrev_b32 v6, 8, v6")
        A("v_lshl_add_u32 v6, v5, 6, v6")
        A("v_and_b32 v9, 1, v2")
        A("v_lshl_add_u32 v6, v9, 5, v6")
        A("v_and_b32 v9, 1, v3")
        A("v_lshl_add_u32 v6, v9, 4, v6")
        A("v_bfe_u32 v9, v2, 1, 1")
        A("v_lshl_add_u32 v6, v9, 3, v6")
        A(f"v_add_u32 v{V_VA}, {VBASE}, v6")
        for j in range(1, 4):
            A(f"v_xor_b32 v{V_VA + j}, {64 * j}, v{V_VA}")
        A(f"s_mov_b32 s{S_C}, {f32(C_SCALE):#x}")
        A(f"s_mov_b32 s{S_NC}, {f32(-C_SCALE):#x}")
        A(f"s_mov_b32 s{S_THR}, {f32(c.thr):#x}")
        for b in range(3):
            A(f"s_mov_b32 s{S_ST2 + b}, {b * 32768 + 4096}")
        A("s_waitcnt lgkmcnt(0)")
        for r, p, off in ((S_K, S_KA + 2, 88), (S_Q, S_KA, 89), (S_V, S_KA + 4, 88), (S_O, S_KA + 6, 89)):
            A(f"s_add_u32 s{r}, s{p}, s{off}")
            A(f"s_addc_u32 s{r + 1}, s{p + 1}, 0")
        if c.stamps:
            A(f"s_memrealtime s[{S_STAMP + 2}:{S_STAMP + 3}]")
        A("L_start:")
        setup = [(f"s_mov_b64 s[{S_FAIL}:{S_FAIL + 1}], 0", "salu", [], [f"s{S_FAIL}"]),
                 (f"s_lshr_b32 s31, s{S_WL}, 4", "salu", [], ["s31", "scc"]),
                 ("s_and_b32 s31, s31, 128", "salu", ["s31"], ["s31", "scc"]),
                 (f"s_add_u32 s47, s{S_QM}, {Q_REG[0][0] * KT}", "salu", [], ["s47", "scc"])]
        for i in range(8):
            setup.append((f"v_xor_b32 v{V_QR + i}, s31, v{V_KA + i}", "valu", ["s31"], [f"v{V_QR + i}"]))
        for i in range(8):
            setup.append((f"v_add_u32 v{V_QR + i}, s47, v{V_QR + i}", "valu", ["s47", f"v{V_QR + i}"], [f"v{V_QR + i}"]))
        L += self.body(setup)
        ns = len(c.stamps)
        assert ns <= 12
        if c.stamps:
            A(f"s_memrealtime s[{S_STAMP + 4 + 2 * ns}:{S_STAMP + 5 + 2 * ns}]")
        A("s_nop 1")
        A(f"s_cmp_lg_u64 s[{S_FAIL}:{S_FAIL + 1}], 0")
        A("s_cselect_b32 s84, 1, 0")
        A(f"s_lshr_b32 s85, s{S_WL}, 9")
        A("v_mov_b32 v128, s84")
        A("v_mov_b32 v129, s85")
        A("v_mov_b32 v130, 0")
        A("s_barrier")
        A("ds_write_b32 v129, v128")
        A("s_waitcnt lgkmcnt(0)")
        A("s_barrier")
        A("ds_read_b128 v[132:135], v130")
        A("s_waitcnt lgkmcnt(0)")
        A("v_or_b32 v132, v132, v133")
        A("v_or3_b32 v132, v132, v134, v135")
        A("s_nop 0")
        A("v_readfirstlane_b32 s84, v132")
        A("s_nop 0")
        A(f"s_andn2_b32 s84, s84, s{S_MODE}")
        A("s_cbranch_scc1 L_fallback")
        if c.stamps:
            A("s_waitcnt vmcnt(0)")
            A(f"s_memrealtime s[{S_STAMP + 6 + 2 * ns}:{S_STAMP + 7 + 2 * ns}]")
            A(f"s_load_dwordx2 s[80:81], s[0:1], {40 if c.stamp_dst == 'ws' else 32}")
            A("s_waitcnt lgkmcnt(0)")
            if c.pad >= 0:
                A("L_pad:")
                A("s_memrealtime s[84:85]")
                A("s_waitcnt lgkmcnt(0)")
                A(f"s_sub_u32 s84, s84, s{S_STAMP + 2 * c.pad}")
                A("s_cmp_lt_u32 s84, 6000")
                A("s_cbranch_scc1 L_pad")
            A("s_mov_b32 s82, " + ("0x10000000" if c.stamp_dst == "ws" else "256"))
            A("s_mov_b32 s83, 0x00020000")
            A(f"s_lshr_b32 s85, s{S_WL}, 5")
            A("s_lshl_b32 s84, s2, 8")
            A("s_add_u32 s84, s84, s85")
            A("v_mov_b32 v129, s84")
            for i in range(ns + 4):
                A(f"v_mov_b32 v128, s{S_STAMP + 2 * i}")
                A(f"buffer_store_dword v128, v129, s[80:83], 0 offen offset:{4 * i} sc1")
        A("L_end:")
        A("s_endpgm")
        A("L_fallback:")
        A("s_waitcnt vmcnt(0)")
        A(f"v_and_b32 v140, 0x1fff, v{V_QO}")
        for b in range(3):
            A(f"v_mov_b32 v{V_MPRE[b]}, 0xff800000")
            for f in range(8):
                A(f"buffer_load_dwordx4 v[{64 + 4 * f}:{67 + 4 * f}], v{V_QO}, s[{S_Q}:{S_Q + 3}], s{S_T + 4 * b} offen offset:{32 * f}")
            A("s_mov_b32 s84, 0")
            A(f"L_fb{b}:")
            for f in range(8):
                A(f"buffer_load_dwordx4 v[{96 + 4 * f}:{99 + 4 * f}], v140, s[{S_K}:{S_K + 3}], s84 offen offset:{32 * f}")
            A("s_waitcnt vmcnt(0)")
            for f in range(8):
                A(f"v_mfma_f32_32x32x16_bf16 v[0:15], v[{96 + 4 * f}:{99 + 4 * f}], v[{64 + 4 * f}:{67 + 4 * f}], {'0' if f == 0 else 'v[0:15]'}")
            A("s_nop 15")
            for i in range(8):
                A(f"v_max3_f32 v{V_MPRE[b]}, v{V_MPRE[b]}, v{2 * i}, v{2 * i + 1}")
            A(f"s_add_u32 s84, s84, {KT}")
            A(f"s_cmp_lt_u32 s84, {12 * KT}")
            A(f"s_cbranch_scc1 L_fb{b}")
        A(f"s_mov_b32 s{S_MODE}, 1")
        A("s_barrier")
        A("s_branch L_start")
        if c.cyc:
            L = [x.replace("s_memrealtime", "s_memtime") for x in L]
        body = "\n".join(x if x.endswith(":") or x.startswith((";", ".")) else "    " + x for x in L)
        body += f"""
.section .rodata,"a"
.p2align 6
.amdhsa_kernel {k}
  .amdhsa_next_free_vgpr 512
  .amdhsa_next_free_sgpr 100
  .amdhsa_accum_offset 256
  .amdhsa_group_segment_fixed_size 0
  .amdhsa_kernarg_size 48
  .amdhsa_user_sgpr_count 2
  .amdhsa_user_sgpr_kernarg_segment_ptr 1
  .amdhsa_system_sgpr_workgroup_id_x 1
  .amdhsa_float_denorm_mode_32 3
.end_amdhsa_kernel
"""
        return body


def parse(args):
    kw = {}
    for a in args:
        k, v = a.split("=", 1)
        d = getattr(Cfg, k)
        if isinstance(d, tuple):
            v = tuple(int(x) for x in v.split(",") if x)
        elif isinstance(d, (int, float)):
            v = type(d)(v)
        kw[k] = v
    return kw


if __name__ == "__main__":
    out = sys.argv[1]
    g = Gen(Cfg(**parse(sys.argv[2:])))
    txt = g.kernel()
    open(out, "w").write(txt)
    gc = g.s.gapcost
    print(out, "mfma", g.s.nm(), g.s.stats, "pre", gc[0], file=sys.stderr)
    ch = "0123456789abcdefghijklmnopqrstuvwxyz"
    for i in range(1, len(gc), 64):
        print(f"{i - 1:4d} " + "".join(ch[min(35, x)] for x in gc[i:i + 64]), file=sys.stderr)
    print("stores", sorted(x for x in g.st_pin.values() if x is not None), file=sys.stderr)
```
